```python
import torch

def _softmax(x, axis=-1):
    return torch.softmax(x, dim=axis)
def _gelu(x):
    return torch.nn.functional.gelu(x, approximate="tanh")
def _silu(x):
    return torch.nn.functional.silu(x)
def _sigmoid(x):
    return torch.sigmoid(x)
def _layernorm(x, axis=-1, eps=1e-5):
    m = x.mean(dim=axis, keepdim=True)
    v = x.var(dim=axis, keepdim=True, unbiased=False)
    return (x - m) / torch.sqrt(v + eps)
def _scatter_add(tgt, idx, src, axis=0):
    return tgt.clone().index_add_(axis, idx, src)
def _segment_sum(src, seg, n):
    out = torch.zeros((n,) + src.shape[1:], dtype=src.dtype)
    return out.index_add_(0, seg, src)
def _pad(x, pw):
    flat = tuple(v for pair in reversed(pw) for v in pair)
    return torch.nn.functional.pad(x, flat)

kernel_name = 'gated_mix__mha_block_cached__dense_activation_silu__decode'

def setup_inputs():

    _w = (lambda a: (lambda t: t.to(torch.bfloat16) if t.is_floating_point() else t)(torch.as_tensor(a)))
    def _A_setup():
        B, Sq, D = 2, 1, 512
        H, Sk, Dh = 32, 8192, 128
        return {
            "x": _w((lambda *s: torch.randn(*s, dtype=torch.bfloat16) * 0.05)(B, Sq, D)),
            "k_cache": _w((lambda *s: torch.randn(*s, dtype=torch.bfloat16) * 3.2)(B, H, Sk, Dh)),
            "v_cache": _w((lambda *s: torch.randn(*s, dtype=torch.bfloat16) * 0.1)(B, H, Sk, Dh)),
            "wq": _w((lambda *s: torch.randn(*s, dtype=torch.bfloat16) * 3.2)(D, H * Dh) * (D ** -0.5)),
            "wo": _w((lambda *s: torch.randn(*s, dtype=torch.bfloat16) * 0.1)(H * Dh, D) * ((H * Dh) ** -0.5)),
        }
    _A_in = _A_setup()

    def _B_setup():
        B, S, D, F = 2, 1, 512, 1792
        return {
            "x": _w((lambda *s: torch.randn(*s, dtype=torch.bfloat16) * 0.05)(B, S, D)),
            "w1": _w((lambda *s: torch.randn(*s, dtype=torch.bfloat16) * 0.05)(D, F) * (D ** -0.5)),
            "w2": _w((lambda *s: torch.randn(*s, dtype=torch.bfloat16) * 0.05)(F, D) * (F ** -0.5)),
        }
    _B_in = _B_setup()

    return {
        "A_x": _A_in["x"],
        "A_k_cache": _A_in["k_cache"],
        "A_v_cache": _A_in["v_cache"],
        "A_wq": _A_in["wq"],
        "A_wo": _A_in["wo"],
        "B_x": _B_in["x"],
        "B_w1": _B_in["w1"],
        "B_w2": _B_in["w2"],
        "gate_w": _w((lambda *s: torch.randn(*s, dtype=torch.bfloat16) * 0.05)(512) * 16.0),
    }

def reference(A_x, A_k_cache, A_v_cache, A_wq, A_wo, B_x, B_w1, B_w2, gate_w):
    def _A_ref(x, k_cache, v_cache, wq, wo):
        B, Sq, D = x.shape
        H, Dh = 32, 128
        q = (lambda x, *d: x.permute(*d))((x @ wq).reshape(B, Sq, H, Dh), 0, 2, 1, 3)
        scores = torch.einsum("bhqd,bhkd->bhqk", q, k_cache) * (Dh ** -0.5)
        p = _softmax(scores, axis=-1)
        o = torch.einsum("bhqk,bhkd->bhqd", p, v_cache)
        return (lambda x, *d: x.permute(*d))(o, 0, 2, 1, 3).reshape(B, Sq, H * Dh) @ wo

    def _B_ref(x, w1, w2):
        h = torch.einsum("bsd,df->bsf", x, w1)
        h = _silu(h)
        out = torch.einsum("bsf,fd->bsd", h, w2)
        return out

    x = A_x
    g = _sigmoid((x * gate_w).sum(-1, keepdims=True))
    a = _A_ref(x, A_k_cache, A_v_cache, A_wq, A_wo)
    b = _B_ref(x, B_w1, B_w2)
    return g * a + (1 - g) * b
```

```python
import sys, math, struct

KN = "gated_mix__mha_block_cached__dense_activation_silu__decode"

def f2u(x):
    return struct.unpack("<I", struct.pack("<f", x))[0]

class Asm:
    def __init__(self):
        self.L = []
        self.q = []
    def __call__(self, s):
        self.L.append("  " + s)
    def label(self, s):
        self.L.append(s + ":")
    def raw(self, s):
        self.L.append(s)
    def vm(self, s, tag):
        self.L.append("  " + s)
        self.q.append(tag)
    def wait_vm(self, *tags):
        last = -1
        for i, t in enumerate(self.q):
            if t in tags:
                last = i
        if last < 0:
            return
        n = len(self.q) - 1 - last
        assert n <= 63
        self.L.append(f"  s_waitcnt vmcnt({n})")
        self.q = self.q[last + 1:]
    def wait_vm_all(self):
        self.L.append("  s_waitcnt vmcnt(0)")
        self.q = []

WS_Y = 0
WS_ML = 512 * 1024
WS_BP = 1024 * 1024
WS_BYTES = 536870912

LOG2E = 1.4426950408889634
SCALE = 128 ** -0.5

def gen(pol_kv="nt", pol_w="", NB=3, mimic=False, T=16):
    a = Asm()
    D = NB - 1
    hdr = open(f"cdna_kernels/{KN}.s.ref").read().split("; Override launch")[0]
    a.raw(hdr.rstrip())
    a.raw("; @launch kernel=attn_kernel grid=(256,1,1) block=(576,1,1) lds=36864")
    a.raw("; @launch kernel=fin_kernel grid=(64,1,1) block=(256,1,1) lds=1024")
    a.raw('.amdgcn_target "amdgcn-amd-amdhsa--gfx950"')
    a.raw(".text")

    a.raw(".globl attn_kernel")
    a.raw(".p2align 8")
    a.raw(".type attn_kernel,@function")
    a.label("attn_kernel")
    a("s_cmp_ge_u32 s2, 256")
    a("s_cbranch_scc1 L1_done")
    a("s_load_dwordx16 s[4:19], s[0:1], 0")
    a("s_load_dwordx8 s[20:27], s[0:1], 64")
    a("v_lshrrev_b32 v1, 6, v0")
    a("v_and_b32 v0, 63, v0")
    a("s_nop 0")
    a("v_readfirstlane_b32 s3, v1")
    sSELLO, sSELHI, sC = 65, 66, 67
    a(f"s_mov_b32 s{sSELLO}, 0x05040100")
    a(f"s_mov_b32 s{sSELHI}, 0x07060302")
    if mimic:
        a(f"s_mov_b32 s{sC}, 0x{f2u(LOG2E):08x}")
        a(f"s_mov_b32 s68, 0x{f2u(SCALE):08x}")
    else:
        a(f"s_mov_b32 s{sC}, 0x{f2u(LOG2E * SCALE):08x}")
    a("s_and_b32 s60, s2, 7")
    a("s_lshr_b32 s61, s2, 3")
    a("s_and_b32 s62, s61, 3")
    a("s_lshl_b32 s60, s60, 2")
    a("s_add_u32 s62, s62, s60")
    a("s_lshr_b32 s61, s61, 2")
    a("s_lshr_b32 s63, s61, 2")
    a("s_and_b32 s64, s61, 3")
    a("s_waitcnt lgkmcnt(0)")
    def srd(d, p, size):
        a(f"s_mov_b32 s{d}, s{p}")
        a(f"s_mov_b32 s{d+1}, s{p+1}")
        a(f"s_mov_b32 s{d+2}, 0x{size:x}")
        a(f"s_mov_b32 s{d+3}, 0x00020000")
    SX, SWQ, SK, SV, SWO, SWS, SW1, SW2 = 28, 32, 36, 40, 44, 48, 52, 56
    srd(SX, 4, 2048)
    srd(SWQ, 10, 512 * 4096 * 2)
    srd(SK, 6, 128 << 20)
    srd(SV, 8, 128 << 20)
    srd(SWO, 12, 4096 * 512 * 2)
    srd(SWS, 26, WS_BYTES)
    srd(SW1, 16, 512 * 1792 * 2)
    srd(SW2, 18, 1792 * 512 * 2)
    a("s_cmp_eq_u32 s3, 8")
    a("s_cbranch_scc1 L1_helper")

    vG, vCc, vKO, vVO = 1, 2, 3, 4
    vM, vL = 5, 6
    vT = 8
    vQ = 24
    vO = 40
    vS = [48, 52]
    vR = 56
    def KB(buf): return vR + buf * 32
    def VB(buf): return vR + buf * 32 + 16
    nvgpr_main = vR + NB * 32

    a(f"v_lshrrev_b32 v{vG}, 4, v0")
    a(f"v_and_b32 v{vCc}, 15, v0")
    a(f"v_lshlrev_b32 v{vKO}, 8, v{vCc}")
    a(f"v_lshl_add_u32 v{vKO}, v{vG}, 4, v{vKO}")
    a(f"v_lshlrev_b32 v{vVO}, 4, v{vCc}")
    a(f"v_lshl_add_u32 v{vVO}, v{vG}, 10, v{vVO}")
    a(f"v_lshlrev_b32 v{vT}, 5, v{vG}")
    a("s_lshl_b32 s60, s63, 10")
    a("s_lshl_b32 s61, s3, 7")
    a("s_add_u32 s60, s60, s61")
    a(f"v_lshlrev_b32 v{vT+1}, 4, v{vCc}")
    a(f"v_lshl_add_u32 v{vT+1}, v{vG}, 17, v{vT+1}")
    vX = vO
    a.vm(f"buffer_load_dwordx4 v[{vX}:{vX+3}], v{vT}, s[{SX}:{SX+3}], s60 offen", "x")
    a.vm(f"buffer_load_dwordx4 v[{vX+4}:{vX+7}], v{vT}, s[{SX}:{SX+3}], s60 offen offset:16", "x")
    wq_regs = [KB(1) + 4 * i for i in range(8)] + [VB(2) + 4 * i for i in range(4)] + [vQ + 4 * i for i in range(4)]
    a("s_lshl_b32 s61, s3, 19")
    a("s_lshl_b32 s69, s62, 8")
    a("s_add_u32 s61, s61, s69")
    for i in range(16):
        r = wq_regs[i]
        a.vm(f"buffer_load_dwordx4 v[{r}:{r+3}], v{vT+1}, s[{SWQ}:{SWQ+3}], s61 offen {pol_w}", f"wq{i}")
        if i < 15:
            a("s_add_u32 s61, s61, 8192")
    a("s_lshl_b32 s60, s63, 5")
    a("s_add_u32 s60, s60, s62")
    a("s_lshl_b32 s60, s60, 21")
    a("s_lshl_b32 s61, s64, 19")
    a("s_add_u32 s60, s60, s61")
    a("s_lshl_b32 s61, s3, 16")
    a("s_add_u32 s60, s60, s61")

    def issue_K(t, buf):
        if t == 0:
            so = "s60"
        else:
            a(f"s_add_u32 s61, s60, {t*4096}")
            so = "s61"
        for j in range(4):
            r = KB(buf) + 4 * j
            a.vm(f"buffer_load_dwordx4 v[{r}:{r+3}], v{vKO}, s[{SK}:{SK+3}], {so} offen offset:{j*64} {pol_kv}", f"K{t}")
    def issue_V(t, buf):
        if t == 0:
            so = "s60"
        else:
            a(f"s_add_u32 s61, s60, {t*4096}")
            so = "s61"
        for r_ in range(4):
            r = VB(buf) + 4 * r_
            a.vm(f"buffer_load_dwordx4 v[{r}:{r+3}], v{vVO}, s[{SV}:{SV+3}], {so} offen offset:{r_*256} {pol_kv}", f"V{t}")
    def issue_G(t):
        buf = t % NB
        if t + 1 < T:
            issue_K(t + 1, buf)
        if t < T:
            issue_V(t, buf)

    issue_K(0, 2)
    issue_G(0)
    if NB > 3:
        for t in range(3, NB):
            pass

    acc = [vS[0] + i for i in range(4)] + [vS[1] + i for i in range(4)]
    for i in range(8):
        a(f"v_mov_b32 v{acc[i]}, 0")
    a.wait_vm("x")
    for p in range(8):
        a.wait_vm(f"wq{2*p}", f"wq{2*p+1}")
        r0, r1 = wq_regs[2 * p], wq_regs[2 * p + 1]
        for d in range(4):
            tl, th = vT + 2 + 2 * (d & 1), vT + 3 + 2 * (d & 1)
            a(f"v_perm_b32 v{tl}, v{r1+d}, v{r0+d}, s{sSELLO}")
            a(f"v_perm_b32 v{th}, v{r1+d}, v{r0+d}, s{sSELHI}")
            a(f"v_dot2_f32_bf16 v{acc[2*d]}, v{tl}, v{vX+p}, v{acc[2*d]}")
            a(f"v_dot2_f32_bf16 v{acc[2*d+1]}, v{th}, v{vX+p}, v{acc[2*d+1]}")
    issue_G(1)

    def reduce_scatter8(regs):
        a("s_nop 2")
        for i in range(4):
            a(f"v_permlane32_swap_b32 v{regs[i]}, v{regs[i+4]}")
        for i in range(4):
            a(f"v_add_f32 v{regs[i]}, v{regs[i]}, v{regs[i+4]}")
        a("s_nop 1")
        for i in range(2):
            a(f"v_permlane16_swap_b32 v{regs[i]}, v{regs[i+2]}")
        for i in range(2):
            a(f"v_add_f32 v{regs[i]}, v{regs[i]}, v{regs[i+2]}")

    L_QP, L_QB, L_OP, L_ML, L_YP, L_H = 0, 4096, 6144, 10240, 10496, 26880
    vLD = 7
    a(f"v_and_b32 v{vT}, 1, v{vG}")
    a(f"v_lshrrev_b32 v{vT+1}, 1, v{vG}")
    a(f"v_lshlrev_b32 v{vLD}, 5, v{vCc}")
    a(f"v_lshl_add_u32 v{vLD}, v{vT}, 3, v{vLD}")
    a(f"v_lshl_add_u32 v{vLD}, v{vT+1}, 4, v{vLD}")
    a("s_lshl_b32 s61, s3, 9")
    a(f"v_add_u32 v{vLD}, s61, v{vLD}")
    reduce_scatter8(acc)
    a(f"ds_write_b64 v{vLD}, v[{acc[0]}:{acc[1]}] offset:{L_QP}")
    a("s_waitcnt lgkmcnt(0)")
    a("s_barrier")
    a(f"v_lshlrev_b32 v{vT}, 3, v0")
    for w in range(8):
        a(f"ds_read_b64 v[{vQ+2*w}:{vQ+2*w+1}], v{vT} offset:{L_QP + w*512}")
    a("s_lshl_b32 s61, s3, 8")
    a(f"v_lshlrev_b32 v{vT+1}, 2, v0")
    a(f"v_add_u32 v{vT+1}, s61, v{vT+1}")
    a(f"v_lshlrev_b32 v{vT+2}, 4, v{vG}")
    a(f"v_add_u32 v{vT+2}, s61, v{vT+2}")
    a("s_waitcnt lgkmcnt(0)")
    for (x, y) in ((0, 1), (2, 3), (4, 5), (6, 7), (0, 2), (4, 6), (0, 4)):
        a(f"v_add_f32 v{vQ+2*x}, v{vQ+2*x}, v{vQ+2*y}")
        a(f"v_add_f32 v{vQ+2*x+1}, v{vQ+2*x+1}, v{vQ+2*y+1}")
    a(f"v_cvt_pk_bf16_f32 v{vT+3}, v{vQ}, v{vQ+1}")
    a(f"ds_write_b32 v{vT+1}, v{vT+3} offset:{L_QB}")
    a("s_waitcnt lgkmcnt(0)")
    for j in range(4):
        a(f"ds_read_b128 v[{vQ+4*j}:{vQ+4*j+3}], v{vT+2} offset:{L_QB + j*64}")
    a(f"v_mov_b32 v{vM}, 0x{f2u(-3.0e38):08x}")
    a(f"v_mov_b32 v{vL}, 0")
    for i in range(8):
        a(f"v_mov_b32 v{vO+i}, 0")
    a("s_waitcnt lgkmcnt(0)")

    def qk(t, buf, S):
        for j in range(4):
            c = "0" if j == 0 else f"v[{S}:{S+3}]"
            a(f"v_mfma_f32_16x16x32_bf16 v[{S}:{S+3}], v[{KB(buf)+4*j}:{KB(buf)+4*j+3}], v[{vQ+4*j}:{vQ+4*j+3}], {c}")

    a.wait_vm("K0")
    qk(0, 2, vS[0])

    def wo_reg(i):
        buf = (T + (i >> 3)) % NB
        return vR + buf * 32 + (i & 7) * 4
    def issue_wo(half):
        if half == 0:
            a(f"v_lshlrev_b32 v{vT+15}, 4, v0")
            a("s_lshl_b32 s69, s62, 17")
            a("s_lshl_b32 s61, s3, 14")
            a("s_add_u32 s69, s69, s61")
        for i in range(half * 8, half * 8 + 8):
            if i & 3 == 0:
                a(f"s_add_u32 s61, s69, {i*1024}")
            r = wo_reg(i)
            a.vm(f"buffer_load_dwordx4 v[{r}:{r+3}], v{vT+15}, s[{SWO}:{SWO+3}], s61 offen offset:{(i&3)*1024} {pol_w}", "wo")

    mN, al, mc, ps, t1, t2, P01, P23 = vT, vT + 1, vT + 2, vT + 4, vT + 8, vT + 9, vT + 10, vT + 11
    pt = [vT + 12, vT + 13, vT + 14, vT + 3]
    for t in range(T):
        if t + D < T:
            issue_G(t + D)
        elif t + D - T < 2:
            issue_wo(t + D - T)
        S = vS[t & 1]
        Sn = vS[(t + 1) & 1]
        buf = t % NB
        a.wait_vm(f"K{t+1}", f"V{t}")
        if t + 1 < T:
            qk(t + 1, buf, Sn)
        if t == 0:
            a("s_nop 7")
        if mimic:
            for h2 in range(2):
                a(f"v_cvt_pk_bf16_f32 v{t1}, v{S+2*h2}, v{S+2*h2+1}")
                a(f"v_lshlrev_b32 v{S+2*h2}, 16, v{t1}")
                a(f"v_and_b32 v{S+2*h2+1}, 0xffff0000, v{t1}")
                a(f"v_mul_f32 v{S+2*h2}, s68, v{S+2*h2}")
                a(f"v_mul_f32 v{S+2*h2+1}, s68, v{S+2*h2+1}")
                a(f"v_cvt_pk_bf16_f32 v{t1}, v{S+2*h2}, v{S+2*h2+1}")
                a(f"v_lshlrev_b32 v{S+2*h2}, 16, v{t1}")
                a(f"v_and_b32 v{S+2*h2+1}, 0xffff0000, v{t1}")
        a(f"v_max3_f32 v{mN}, v{S}, v{S+1}, v{vM}")
        a(f"v_max3_f32 v{mN}, v{S+2}, v{S+3}, v{mN}")
        a(f"v_sub_f32 v{al}, v{vM}, v{mN}")
        a(f"v_mul_f32 v{mc}, s{sC}, v{mN}")
        a(f"v_mul_f32 v{al}, s{sC}, v{al}")
        for i in range(4):
            a(f"v_fma_f32 v{ps+i}, v{S+i}, s{sC}, -v{mc}")
        a(f"v_exp_f32 v{al}, v{al}")
        for i in range(4):
            a(f"v_exp_f32 v{ps+i}, v{ps+i}")
        a(f"v_mov_b32 v{vM}, v{mN}")
        for i in range(8):
            a(f"v_mul_f32 v{vO+i}, v{al}, v{vO+i}")
        a(f"v_cvt_pk_bf16_f32 v{P01}, v{ps}, v{ps+1}")
        a(f"v_cvt_pk_bf16_f32 v{P23}, v{ps+2}, v{ps+3}")
        a(f"v_add_f32 v{t1}, v{ps}, v{ps+1}")
        a(f"v_add_f32 v{t2}, v{ps+2}, v{ps+3}")
        a(f"v_add_f32 v{t1}, v{t1}, v{t2}")
        a(f"v_fma_f32 v{vL}, v{vL}, v{al}, v{t1}")
        for pr, P in ((0, P01), (2, P23)):
            r0, r1 = VB(buf) + 4 * pr, VB(buf) + 4 * (pr + 1)
            for d in range(4):
                tl, th = pt[2 * (d & 1)], pt[2 * (d & 1) + 1]
                a(f"v_perm_b32 v{tl}, v{r1+d}, v{r0+d}, s{sSELLO}")
                a(f"v_perm_b32 v{th}, v{r1+d}, v{r0+d}, s{sSELHI}")
                a(f"v_dot2_f32_bf16 v{vO+2*d}, v{tl}, v{P}, v{vO+2*d}")
                a(f"v_dot2_f32_bf16 v{vO+2*d+1}, v{th}, v{P}, v{vO+2*d+1}")

    x1, x2, MW, f = vT, vT + 1, vT + 2, vT + 3
    a(f"v_mov_b32 v{x1}, v{vM}")
    a(f"v_mov_b32 v{x2}, v{vM}")
    a("s_nop 1")
    a(f"v_permlane32_swap_b32 v{x1}, v{x2}")
    a(f"v_max_f32 v{x1}, v{x1}, v{x2}")
    a(f"v_mov_b32 v{x2}, v{x1}")
    a("s_nop 1")
    a(f"v_permlane16_swap_b32 v{x1}, v{x2}")
    a(f"v_max_f32 v{MW}, v{x1}, v{x2}")
    a(f"v_sub_f32 v{f}, v{vM}, v{MW}")
    a(f"v_mul_f32 v{f}, s{sC}, v{f}")
    a(f"v_exp_f32 v{f}, v{f}")
    a("s_nop 0")
    a(f"v_mul_f32 v{x1}, v{f}, v{vL}")
    a(f"v_mul_f32 v{x2}, v{f}, v{vL}")
    for i in range(8):
        a(f"v_mul_f32 v{vO+i}, v{f}, v{vO+i}")
    a(f"v_permlane32_swap_b32 v{x1}, v{x2}")
    a(f"v_add_f32 v{x1}, v{x1}, v{x2}")
    a(f"v_mov_b32 v{x2}, v{x1}")
    a("s_nop 1")
    a(f"v_permlane16_swap_b32 v{x1}, v{x2}")
    a(f"v_add_f32 v{MW+1}, v{x1}, v{x2}")
    reduce_scatter8([vO + i for i in range(8)])
    a(f"ds_write_b64 v{vLD}, v[{vO}:{vO+1}] offset:{L_OP}")
    a("s_lshl_b32 s61, s3, 3")
    a(f"v_mov_b32 v{x1}, s61")
    assert MW % 2 == 0
    a(f"ds_write_b64 v{x1}, v[{MW}:{MW+1}] offset:{L_ML}")
    a("s_waitcnt lgkmcnt(0)")
    a("s_barrier")
    a(f"v_mov_b32 v{x1}, 0")
    for i in range(4):
        a(f"ds_read_b128 v[{vQ+4*i}:{vQ+4*i+3}], v{x1} offset:{L_ML + 16*i}")
    a("s_lshl_b32 s61, s3, 6")
    a(f"v_lshlrev_b32 v{x2}, 2, v{vCc}")
    a(f"v_add_u32 v{x2}, s61, v{x2}")
    op = [vS[0] + i for i in range(4)] + [vS[1] + i for i in range(4)]
    for w in range(8):
        a(f"ds_read_b32 v{op[w]}, v{x2} offset:{L_OP + w*512}")
    a("s_waitcnt lgkmcnt(8)")
    Mt, Lt = vT + 4, vT + 5
    a(f"v_max3_f32 v{Mt}, v{vQ}, v{vQ+2}, v{vQ+4}")
    a(f"v_max3_f32 v{Mt}, v{vQ+6}, v{vQ+8}, v{Mt}")
    a(f"v_max3_f32 v{Mt}, v{vQ+10}, v{vQ+12}, v{Mt}")
    a(f"v_max_f32 v{Mt}, v{vQ+14}, v{Mt}")
    for w in range(8):
        a(f"v_sub_f32 v{vQ+2*w}, v{vQ+2*w}, v{Mt}")
    for w in range(8):
        a(f"v_mul_f32 v{vQ+2*w}, s{sC}, v{vQ+2*w}")
    for w in range(8):
        a(f"v_exp_f32 v{vQ+2*w}, v{vQ+2*w}")
    a("s_nop 0")
    a(f"v_mul_f32 v{Lt}, v{vQ}, v{vQ+1}")
    for w in range(1, 8):
        a(f"v_fma_f32 v{Lt}, v{vQ+2*w}, v{vQ+2*w+1}, v{Lt}")
    a("s_waitcnt lgkmcnt(0)")
    ot = vT + 6
    a(f"v_mul_f32 v{ot}, v{vQ}, v{op[0]}")
    for w in range(1, 8):
        a(f"v_fma_f32 v{ot}, v{vQ+2*w}, v{op[w]}, v{ot}")
    a("s_nop 0")
    sO = 72
    for i in range(16):
        a(f"v_readlane_b32 s{sO+i}, v{ot}, {i}")
    ya = [vO + i for i in range(8)]
    for i in range(8):
        a(f"v_mov_b32 v{ya[i]}, 0")
    a.wait_vm("wo")
    u0, u1 = vT + 8, vT + 9
    u2, u3 = vT + 10, vT + 11
    for i in range(16):
        r = wo_reg(i)
        for d in range(4):
            lo, hi = (u0, u1) if d & 1 == 0 else (u2, u3)
            a(f"v_lshlrev_b32 v{lo}, 16, v{r+d}")
            a(f"v_and_b32 v{hi}, 0xffff0000, v{r+d}")
            a(f"v_fmac_f32 v{ya[2*d]}, s{sO+i}, v{lo}")
            a(f"v_fmac_f32 v{ya[2*d+1]}, s{sO+i}, v{hi}")
    a("s_lshl_b32 s61, s3, 11")
    a(f"v_lshlrev_b32 v{x1}, 5, v0")
    a(f"v_add_u32 v{x1}, s61, v{x1}")
    a(f"ds_write_b128 v{x1}, v[{ya[0]}:{ya[3]}] offset:{L_YP}")
    a(f"ds_write_b128 v{x1}, v[{ya[4]}:{ya[7]}] offset:{L_YP+16}")
    a("s_waitcnt lgkmcnt(0)")
    a("s_barrier")
    a("s_lshl_b32 s61, s3, 8")
    a(f"v_lshlrev_b32 v{x1}, 2, v0")
    a(f"v_add_u32 v{x1}, s61, v{x1}")
    for w in range(8):
        a(f"ds_read_b32 v{op[w]}, v{x1} offset:{L_YP + w*2048}")
    a("s_lshl_b32 s61, s63, 5")
    a("s_lshl_b32 s69, s3, 2")
    a("s_add_u32 s61, s61, s69")
    a("s_lshl_b32 s61, s61, 13")
    a("s_lshl_b32 s69, s62, 2")
    a("s_add_u32 s69, s69, s64")
    a("s_lshl_b32 s70, s69, 6")
    a("s_add_u32 s61, s61, s70")
    a(f"v_lshlrev_b32 v{x2}, 2, v{vCc}")
    a(f"v_lshl_add_u32 v{x2}, v{vG}, 13, v{x2}")
    a("s_waitcnt lgkmcnt(0)")
    for (x, y) in ((0, 1), (2, 3), (4, 5), (6, 7), (0, 2), (4, 6), (0, 4)):
        a(f"v_add_f32 v{op[x]}, v{op[x]}, v{op[y]}")
    a.vm(f"buffer_store_dword v{op[0]}, v{x2}, s[{SWS}:{SWS+3}], s61 offen", "st")
    a("s_cmp_lg_u32 s3, 0")
    a("s_cbranch_scc1 L1_done")
    a("s_lshl_b32 s61, s63, 7")
    a("s_add_u32 s61, s61, s69")
    a("s_lshl_b32 s61, s61, 3")
    a(f"s_add_u32 s61, s61, {WS_ML}")
    a(f"v_mov_b32 v{x1}, 0")
    a("v_cmp_eq_u32 vcc, 0, v0")
    a("s_and_saveexec_b64 s[70:71], vcc")
    assert Mt % 2 == 0 and Lt == Mt + 1
    a(f"buffer_store_dwordx2 v[{Mt}:{Lt}], v{x1}, s[{SWS}:{SWS+3}], s61 offen")
    a("s_branch L1_done")

    a.q = []
    a.label("L1_helper")
    a("s_cmp_ge_u32 s2, 56")
    a("s_cbranch_scc1 L1_done")
    hR, hC, hO1, hO2 = 1, 2, 3, 4
    hT = 8
    hX = 16
    hA = 48
    hW = 64
    assert hW + 96 <= 168
    a(f"v_lshrrev_b32 v{hR}, 2, v0")
    a(f"v_and_b32 v{hC}, 3, v0")
    a("s_mov_b32 s60, 114688")
    a(f"v_mul_lo_u32 v{hO1}, v{hR}, s60")
    a(f"v_lshl_add_u32 v{hO1}, v{hC}, 4, v{hO1}")
    a(f"v_lshlrev_b32 v{hT}, 6, v{hR}")
    a(f"v_lshlrev_b32 v{hO2}, 4, v0")
    for b in range(2):
        for k in range(4):
            r = hX + b * 16 + 4 * k
            a.vm(f"buffer_load_dwordx4 v[{r}:{r+3}], v{hT}, s[{SX}:{SX+3}], 0 offen offset:{b*1024 + k*16}", "hx")
    a("s_lshl_b32 s60, s2, 6")
    a("s_lshl_b32 s62, s2, 15")
    def h_issue_w1(ph):
        buf = ph % 3
        for i in range(8 * ph, 8 * ph + 8):
            if i & 1 == 0:
                a(f"s_add_u32 s61, s60, {i*3584}")
            r = hW + buf * 32 + (i & 7) * 4
            a.vm(f"buffer_load_dwordx4 v[{r}:{r+3}], v{hO1}, s[{SW1}:{SW1+3}], s61 offen offset:{(i&1)*3584} {pol_w}", f"w1_{ph}")
    def h_issue_w2(ph):
        buf = (ph + 4) % 3
        for j in range(8 * ph, 8 * ph + 8):
            if j & 3 == 0:
                a(f"s_add_u32 s61, s62, {j*1024}")
            r = hW + buf * 32 + (j & 7) * 4
            a.vm(f"buffer_load_dwordx4 v[{r}:{r+3}], v{hO2}, s[{SW2}:{SW2+3}], s61 offen offset:{(j&3)*1024} {pol_w}", f"w2_{ph}")
    h_issue_w1(0); h_issue_w1(1); h_issue_w1(2)
    a("s_barrier")
    for i in range(16):
        a(f"v_mov_b32 v{hA+i}, 0")
    def h_compute(buf, xs):
        for p in range(4):
            r0, r1 = hW + buf * 32 + 8 * p, hW + buf * 32 + 8 * p + 4
            for d in range(4):
                tl, th = hT + 2 + 2 * (d & 1), hT + 3 + 2 * (d & 1)
                a(f"v_perm_b32 v{tl}, v{r1+d}, v{r0+d}, s{sSELLO}")
                a(f"v_perm_b32 v{th}, v{r1+d}, v{r0+d}, s{sSELHI}")
                for b in range(2):
                    a(f"v_dot2_f32_bf16 v{hA+b*8+2*d}, v{tl}, v{xs(b,p)}, v{hA+b*8+2*d}")
                    a(f"v_dot2_f32_bf16 v{hA+b*8+2*d+1}, v{th}, v{xs(b,p)}, v{hA+b*8+2*d+1}")
    a.wait_vm("hx")
    for ph in range(4):
        a.wait_vm(f"w1_{ph}")
        h_compute(ph % 3, lambda b, p, ph=ph: hX + b * 16 + ph * 4 + p)
        if ph == 0:
            h_issue_w1(3)
        else:
            h_issue_w2(ph - 1)
    a(f"v_lshlrev_b32 v{hT}, 8, v{hR}")
    a(f"v_lshl_add_u32 v{hT}, v{hC}, 5, v{hT}")
    a("s_nop 2")
    for b in range(2):
        a(f"ds_write_b128 v{hT}, v[{hA+b*8}:{hA+b*8+3}] offset:{L_H + b*128}")
        a(f"ds_write_b128 v{hT}, v[{hA+b*8+4}:{hA+b*8+7}] offset:{L_H + b*128 + 16}")
    a(f"v_lshlrev_b32 v{hT+1}, 2, v0")
    a("s_waitcnt lgkmcnt(0)")
    for rr in range(16):
        a(f"ds_read_b32 v{hX+rr}, v{hT+1} offset:{L_H + rr*256}")
    a("s_waitcnt lgkmcnt(0)")
    for st in (1, 2, 4, 8):
        for i in range(0, 16, 2 * st):
            a(f"v_add_f32 v{hX+i}, v{hX+i}, v{hX+i+st}")
    hv, e = hX, hX + 1
    a(f"v_cvt_pk_bf16_f32 v{hv}, v{hv}, v{hv}")
    a(f"v_lshlrev_b32 v{hv}, 16, v{hv}")
    a(f"v_mul_f32 v{e}, 0x{f2u(-LOG2E):08x}, v{hv}")
    a(f"v_exp_f32 v{e}, v{e}")
    a("s_nop 0")
    a(f"v_add_f32 v{e}, 1.0, v{e}")
    a(f"v_rcp_f32 v{e}, v{e}")
    a("s_nop 0")
    a(f"v_mul_f32 v{hv}, v{hv}, v{e}")
    a(f"v_cvt_pk_bf16_f32 v{hv}, v{hv}, v{hv}")
    a(f"v_lshlrev_b32 v{hT+1}, 1, v0")
    L_HS = L_H + 4096
    a(f"ds_write_b16 v{hT+1}, v{hv} offset:{L_HS}")
    a(f"v_mov_b32 v{hT+1}, 0")
    a("s_waitcnt lgkmcnt(0)")
    for k in range(8):
        a(f"ds_read_b128 v[{hX+4*k}:{hX+4*k+3}], v{hT+1} offset:{L_HS + 16*k}")
    for i in range(16):
        a(f"v_mov_b32 v{hA+i}, 0")
    a("s_waitcnt lgkmcnt(0)")
    for ph in range(4):
        a.wait_vm(f"w2_{ph}")
        h_compute((ph + 4) % 3, lambda b, p, ph=ph: hX + b * 16 + ph * 4 + p)
        if ph == 0:
            h_issue_w2(3)
    a(f"v_lshrrev_b32 v{hT}, 1, v0")
    a(f"v_lshlrev_b32 v{hT}, 12, v{hT}")
    a(f"v_and_b32 v{hT+1}, 1, v0")
    a(f"v_lshl_add_u32 v{hT}, v{hT+1}, 5, v{hT}")
    a("s_lshl_b32 s61, s2, 6")
    a(f"s_add_u32 s61, s61, {WS_BP}")
    a(f"s_add_u32 s62, s61, {32*64*64}")
    a("s_nop 2")
    for b in range(2):
        so = "s61" if b == 0 else "s62"
        a(f"buffer_store_dwordx4 v[{hA+b*8}:{hA+b*8+3}], v{hT}, s[{SWS}:{SWS+3}], {so} offen")
        a(f"buffer_store_dwordx4 v[{hA+b*8+4}:{hA+b*8+7}], v{hT}, s[{SWS}:{SWS+3}], {so} offen offset:16")
    a.label("L1_done")
    a("s_endpgm")
    nv1 = max(nvgpr_main, hW + 96)

    a.q = []
    a.raw(".globl fin_kernel")
    a.raw(".p2align 8")
    a.raw(".type fin_kernel,@function")
    a.label("fin_kernel")
    a("s_cmp_ge_u32 s2, 64")
    a("s_cbranch_scc1 L2_done")
    a("s_load_dwordx2 s[4:5], s[0:1], 0")
    a("s_load_dwordx8 s[20:27], s[0:1], 64")
    a("v_lshrrev_b32 v1, 6, v0")
    a("v_and_b32 v2, 15, v0")
    a("v_lshrrev_b32 v3, 4, v0")
    a("v_readfirstlane_b32 s3, v1")
    a("s_lshr_b32 s63, s2, 5")
    a("s_waitcnt lgkmcnt(0)")
    srd(SX, 4, 2048)
    srd(32, 20, 1024)
    srd(36, 22, 2048)
    srd(SWS, 26, WS_BYTES)
    a("s_lshl_b32 s60, s2, 13")
    a("v_lshlrev_b32 v4, 2, v2")
    a("v_lshl_add_u32 v4, v3, 9, v4")
    Y = 16
    for i in range(8):
        a.vm(f"buffer_load_dword v{Y+i}, v4, s[{SWS}:{SWS+3}], s60 offen offset:{i*64}", "y")
    ML = 24
    a("s_lshl_b32 s61, s63, 10")
    a(f"s_add_u32 s61, s61, {WS_ML}")
    a("v_lshlrev_b32 v5, 6, v3")
    for i in range(4):
        a.vm(f"buffer_load_dwordx4 v[{ML+4*i}:{ML+4*i+3}], v5, s[{SWS}:{SWS+3}], s61 offen offset:{i*16}", "ml")
    BP = 40
    for i in range(4):
        a(f"v_mov_b32 v{BP+i}, 0")
    a("s_lshl_b32 s61, s2, 12")
    a(f"s_add_u32 s61, s61, {WS_BP}")
    a("v_lshlrev_b32 v6, 2, v2")
    a("v_lshl_add_u32 v6, v3, 8, v6")
    a("v_cmp_gt_u32 vcc, 14, v3")
    a("s_and_saveexec_b64 s[70:71], vcc")
    for i in range(4):
        a.vm(f"buffer_load_dword v{BP+i}, v6, s[{SWS}:{SWS+3}], s61 offen offset:{i*64}", "bp")
    a("s_mov_b64 exec, s[70:71]")
    a("v_lshlrev_b32 v7, 2, v0")
    a("s_lshl_b32 s61, s63, 10")
    a.vm(f"buffer_load_dword v44, v7, s[{SX}:{SX+3}], s61 offen", "g")
    a.vm("buffer_load_dword v45, v7, s[32:35], 0 offen", "g")
    sC2 = 67
    a(f"s_mov_b32 s{sC2}, 0x{f2u(LOG2E if mimic else LOG2E * SCALE):08x}")
    a.wait_vm("ml")
    for hh in range(2):
        B = ML + hh * 8
        Mx, Ls = 8 + hh * 2, 9 + hh * 2
        a(f"v_max3_f32 v{Mx}, v{B}, v{B+2}, v{B+4}")
        a(f"v_max_f32 v{Mx}, v{B+6}, v{Mx}")
        for s_ in range(4):
            a(f"v_sub_f32 v{B+2*s_}, v{B+2*s_}, v{Mx}")
        for s_ in range(4):
            a(f"v_mul_f32 v{B+2*s_}, s{sC2}, v{B+2*s_}")
        for s_ in range(4):
            a(f"v_exp_f32 v{B+2*s_}, v{B+2*s_}")
        a("s_nop 0")
        a(f"v_mul_f32 v{Ls}, v{B}, v{B+1}")
        for s_ in range(1, 4):
            a(f"v_fma_f32 v{Ls}, v{B+2*s_}, v{B+2*s_+1}, v{Ls}")
        a(f"v_rcp_f32 v{Ls}, v{Ls}")
        a(f"v_mul_f32 v{Mx}, v{B}, v{Y+hh*4}")
        for s_ in range(1, 4):
            a(f"v_fma_f32 v{Mx}, v{B+2*s_}, v{Y+hh*4+s_}, v{Mx}")
    a("v_mul_f32 v12, v8, v9")
    a("v_fma_f32 v12, v10, v11, v12")
    a.wait_vm("bp")
    a(f"v_add_f32 v13, v{BP}, v{BP+1}")
    a(f"v_add_f32 v14, v{BP+2}, v{BP+3}")
    a("v_add_f32 v13, v13, v14")
    a.wait_vm("g")
    a("v_lshlrev_b32 v46, 16, v44")
    a("v_and_b32 v47, 0xffff0000, v44")
    a("v_lshlrev_b32 v48, 16, v45")
    a("v_and_b32 v49, 0xffff0000, v45")
    a("v_mul_f32 v46, v46, v48")
    a("v_mul_f32 v47, v47, v49")
    a("v_cvt_pk_bf16_f32 v46, v46, v47")
    a("v_lshlrev_b32 v47, 16, v46")
    a("v_and_b32 v46, 0xffff0000, v46")
    a("v_add_f32 v14, v46, v47")
    a("v_permlane32_swap_b32 v12, v13")
    a("v_add_f32 v12, v12, v13")
    a("v_mov_b32 v13, v12")
    a("v_mov_b32 v15, v14")
    a("s_nop 0")
    a("v_permlane16_swap_b32 v12, v13")
    a("v_permlane32_swap_b32 v14, v15")
    a("v_add_f32 v12, v12, v13")
    a("v_add_f32 v14, v14, v15")
    a("v_mov_b32 v15, v14")
    a("s_nop 1")
    a("v_permlane16_swap_b32 v14, v15")
    a("v_add_f32 v14, v14, v15")
    for rr in (8, 4, 2, 1):
        a("s_nop 1")
        a(f"v_add_f32_dpp v14, v14, v14 row_ror:{rr} row_mask:0xf bank_mask:0xf")
    a("v_and_b32 v4, 63, v0")
    a("v_lshrrev_b32 v5, 5, v4")
    a("v_lshlrev_b32 v5, 6, v5")
    a("v_lshl_add_u32 v5, v2, 2, v5")
    a("s_lshl_b32 s61, s3, 7")
    a("v_add_u32 v5, s61, v5")
    a("ds_write_b32 v5, v12")
    a("s_lshl_b32 s61, s3, 2")
    a("v_mov_b32 v6, s61")
    a("ds_write_b32 v6, v14 offset:512")
    a("s_waitcnt lgkmcnt(0)")
    a("s_barrier")
    a("s_cmp_lg_u32 s3, 0")
    a("s_cbranch_scc1 L2_done")
    a("v_lshlrev_b32 v5, 2, v2")
    for w in range(4):
        a(f"ds_read_b32 v{16+w}, v5 offset:{w*128}")
        a(f"ds_read_b32 v{20+w}, v5 offset:{w*128+64}")
    a("v_mov_b32 v6, 0")
    a("ds_read_b128 v[24:27], v6 offset:512")
    a("s_waitcnt lgkmcnt(0)")
    a("v_add_f32 v16, v16, v17"); a("v_add_f32 v18, v18, v19"); a("v_add_f32 v16, v16, v18")
    a("v_add_f32 v20, v20, v21"); a("v_add_f32 v22, v22, v23"); a("v_add_f32 v20, v20, v22")
    a("v_add_f32 v24, v24, v25"); a("v_add_f32 v26, v26, v27"); a("v_add_f32 v24, v24, v26")
    def rbf(r):
        a(f"v_cvt_pk_bf16_f32 v{r}, v{r}, v{r}")
        a(f"v_lshlrev_b32 v{r}, 16, v{r}")
    rbf(16); rbf(20); rbf(24)
    a(f"v_mul_f32 v24, 0x{f2u(-LOG2E):08x}, v24")
    a("v_exp_f32 v24, v24")
    a("s_nop 0")
    a("v_add_f32 v24, 1.0, v24")
    a("v_rcp_f32 v24, v24")
    a("s_nop 0")
    rbf(24)
    a("v_sub_f32 v25, 1.0, v24")
    rbf(25)
    a("v_mul_f32 v16, v24, v16"); rbf(16)
    a("v_mul_f32 v20, v25, v20"); rbf(20)
    a("v_add_f32 v16, v16, v20")
    a("v_cvt_pk_bf16_f32 v16, v16, v16")
    a("s_lshl_b32 s61, s2, 5")
    a("v_lshlrev_b32 v5, 1, v2")
    a("v_cmp_gt_u32 vcc, 16, v0")
    a("s_and_saveexec_b64 s[70:71], vcc")
    a("buffer_store_short v16, v5, s[36:39], s61 offen")
    a.label("L2_done")
    a("s_endpgm")

    a.raw('.section .rodata,"a"')
    def kd(name, nv):
        a.raw(".p2align 6")
        a.raw(f".amdhsa_kernel {name}")
        a.raw(f"  .amdhsa_next_free_vgpr {nv}")
        a.raw("  .amdhsa_next_free_sgpr 96")
        a.raw(f"  .amdhsa_accum_offset {(nv+3)//4*4}")
        a.raw("  .amdhsa_group_segment_fixed_size 0")
        a.raw("  .amdhsa_kernarg_size 96")
        a.raw("  .amdhsa_user_sgpr_count 2")
        a.raw("  .amdhsa_user_sgpr_kernarg_segment_ptr 1")
        a.raw("  .amdhsa_system_sgpr_workgroup_id_x 1")
        a.raw(".end_amdhsa_kernel")
    kd("attn_kernel", nv1)
    kd("fin_kernel", 52)
    return "\n".join(a.L) + "\n"

if __name__ == "__main__":
    import argparse
    ap = argparse.ArgumentParser()
    ap.add_argument("-o", default=f"cdna_kernels/{KN}.s")
    ap.add_argument("--pol_kv", default="nt")
    ap.add_argument("--pol_w", default="")
    ap.add_argument("--nb", type=int, default=3)
    ap.add_argument("--mimic", action="store_true")
    args = ap.parse_args()
    open(args.o, "w").write(gen(pol_kv=args.pol_kv, pol_w=args.pol_w, NB=args.nb, mimic=args.mimic))
```

```python
import sys, math, struct

KN = "gated_mix__mha_block_cached__dense_activation_silu__decode"

def f2u(x):
    return struct.unpack("<I", struct.pack("<f", x))[0]

class Asm:
    def __init__(self):
        self.L = []
        self.q = []
    def __call__(self, s):
        self.L.append("  " + s)
    def label(self, s):
        self.L.append(s + ":")
    def raw(self, s):
        self.L.append(s)
    def vm(self, s, tag):
        self.L.append("  " + s)
        self.q.append(tag)
    def wait_vm(self, *tags):
        last = -1
        for i, t in enumerate(self.q):
            if t in tags:
                last = i
        if last < 0:
            return
        n = len(self.q) - 1 - last
        assert n <= 63, n
        self.L.append(f"  s_waitcnt vmcnt({n})")
        self.q = self.q[last + 1:]

WS_Y = 0
WS_ML = 512 * 1024
WS_BP = 1024 * 1024
WS_ST = 4 * 1024 * 1024
WS_BYTES = 536870912

LOG2E = 1.4426950408889634
SCALE = 128 ** -0.5
OOB = 0x40000000

def gen(pol_kv="nt", pol_w="", NB=4, NT=4, mimic=False, stamp=False, ypace=2, wo_per_step=2, kpat="mc", kpeel="c"):
    a = Asm()
    D = NB - 1
    U = {2: 4, 3: 6, 4: 4}[NB]
    def STAMP(k):
        if stamp:
            a(f"s_memrealtime s[{90+2*k}:{91+2*k}]")
    def STAMP_STORE(n, base_expr_lines, srd, vtmp):
        if not stamp: return
        a("s_waitcnt lgkmcnt(0)")
        for l in base_expr_lines: a(l)
        a(f"s_add_u32 s61, s61, {WS_ST}")
        for k in range(n):
            a(f"v_mov_b32 v{vtmp+1+k}, s{90+2*k}")
        a(f"v_mov_b32 v{vtmp}, 0")
        for k in range(n):
            a(f"buffer_store_dword v{vtmp+1+k}, v{vtmp}, s[{srd}:{srd+3}], s61 offen offset:{4*k}")

    hdr = open(f"cdna_kernels/{KN}.s.ref").read().split("; Override launch")[0]
    a.raw(hdr.rstrip())
    a.raw("; @launch kernel=attn_kernel grid=(256,1,1) block=(512,1,1) lds=147456")
    a.raw("; @launch kernel=fin_kernel grid=(64,1,1) block=(256,1,1) lds=1024")
    a.raw('.amdgcn_target "amdgcn-amd-amdhsa--gfx950"')
    a.raw(".text")

    a.raw(".globl attn_kernel")
    a.raw(".p2align 8")
    a.raw(".type attn_kernel,@function")
    a.label("attn_kernel")
    a("s_cmp_ge_u32 s2, 256")
    a("s_cbranch_scc1 L1_done")
    STAMP(0)
    a("s_load_dwordx16 s[4:19], s[0:1], 0")
    a("s_load_dwordx8 s[20:27], s[0:1], 64")
    a("v_lshrrev_b32 v1, 6, v0")
    a("v_and_b32 v0, 63, v0")
    a("s_nop 0")
    a("v_readfirstlane_b32 s3, v1")
    sSELLO, sSELHI, sC = 65, 66, 67
    a(f"s_mov_b32 s{sSELLO}, 0x05040100")
    a(f"s_mov_b32 s{sSELHI}, 0x07060302")
    if mimic:
        a(f"s_mov_b32 s{sC}, 0x{f2u(LOG2E):08x}")
        a(f"s_mov_b32 s68, 0x{f2u(SCALE):08x}")
    else:
        a(f"s_mov_b32 s{sC}, 0x{f2u(LOG2E * SCALE):08x}")
    a("s_and_b32 s60, s2, 7")
    a("s_lshr_b32 s61, s2, 3")
    a("s_and_b32 s62, s61, 3")
    a("s_lshl_b32 s62, s62, 3")
    a("s_add_u32 s62, s62, s60")
    a("s_lshr_b32 s61, s61, 2")
    a("s_lshr_b32 s63, s61, 2")
    a("s_and_b32 s64, s61, 3")

    vG, vCc, vKO, vVO = 1, 2, 3, 4
    vM, vL, vLD = 5, 6, 7
    vT = 8
    vQ = 24
    vO = 40
    vS = [48, 52]
    vQc = 52
    vR = 56
    vW = vR + 128
    vCA, vC1 = vW + 65, vW + 66
    NV1 = vW + 70
    assert NV1 <= 256 and NB <= 4 and NT <= 4
    def KB(buf): return vR + buf * 32
    def VB(buf): return vR + buf * 32 + 16

    L_QP, L_QB, L_OP, L_ML, L_CNT, L_P = 0, 2048, 4096, 8192, 8328, 8448
    L_W = 16384

    a(f"v_mov_b32 v{vCA}, 0")
    a(f"v_mov_b32 v{vC1}, 1")
    a(f"v_lshrrev_b32 v{vG}, 4, v0")
    a(f"v_and_b32 v{vCc}, 15, v0")
    a(f"v_lshlrev_b32 v{vKO}, 8, v{vCc}")
    a(f"v_lshl_add_u32 v{vKO}, v{vG}, 4, v{vKO}")
    a(f"v_lshlrev_b32 v{vVO}, 4, v{vCc}")
    a(f"v_lshl_add_u32 v{vVO}, v{vG}, 10, v{vVO}")
    a(f"v_and_b32 v{vT}, 1, v{vG}")
    a(f"v_lshrrev_b32 v{vT+1}, 1, v{vG}")
    a(f"v_lshlrev_b32 v{vLD}, 5, v{vCc}")
    a(f"v_lshl_add_u32 v{vLD}, v{vT}, 3, v{vLD}")
    a(f"v_lshl_add_u32 v{vLD}, v{vT+1}, 4, v{vLD}")
    a("s_lshl_b32 s61, s3, 9")
    a(f"v_add_u32 v{vLD}, s61, v{vLD}")
    a("s_lshl_b32 s60, s63, 5")
    a("s_add_u32 s60, s60, s62")
    a("s_lshl_b32 s60, s60, 21")
    a("s_lshl_b32 s61, s64, 19")
    a("s_add_u32 s60, s60, s61")
    a("s_lshl_b32 s71, s3, 14")
    a(f"s_add_u32 s71, s71, {L_W}")
    sFF, sB0 = 88, 89
    a("s_lshr_b32 s61, s2, 3")
    a("s_cmp_lt_u32 s61, 28")
    a(f"s_cselect_b32 s{sFF}, 1, 0")
    a(f"s_sub_u32 s{sB0}, {4*NT}, s{sFF}")
    sOFF = 72
    sWP, sTMP = 86, 87
    a(f"s_mov_b32 s{sWP}, 0")
    a("s_mov_b32 s84, 0")
    a("s_mov_b32 s82, 0")
    a("s_waitcnt lgkmcnt(0)")
    def srd(d, p, size):
        a(f"s_mov_b32 s{d}, s{p}")
        a(f"s_mov_b32 s{d+1}, s{p+1}")
        a(f"s_mov_b32 s{d+2}, 0x{size:x}")
        a(f"s_mov_b32 s{d+3}, 0x00020000")
    SX, SWQ, SK, SV, SWO, SWS, SW1, SW2 = 28, 32, 36, 40, 44, 48, 52, 56
    srd(SX, 4, 2048)
    srd(SWQ, 10, 512 * 4096 * 2)
    srd(SK, 6, 128 << 20)
    srd(SV, 8, 128 << 20)
    srd(SWO, 12, 4096 * 512 * 2)
    srd(SWS, 26, WS_BYTES)
    srd(SW1, 16, 512 * 1792 * 2)
    srd(SW2, 18, 1792 * 512 * 2)

    def issue_K(seq, buf, pat="c"):
        for j in range(4):
            r = KB(buf) + 4 * j
            if pat == "c":
                a.vm(f"buffer_load_dwordx4 v[{r}:{r+3}], v{vVO}, s[{SK}:{SK+3}], s{sOFF + seq % U} offen offset:{j*256} {pol_kv}", f"K{seq}")
            else:
                a.vm(f"buffer_load_dwordx4 v[{r}:{r+3}], v{vKO}, s[{SK}:{SK+3}], s{sOFF + seq % U} offen offset:{j*64} {pol_kv}", f"K{seq}")
    def issue_V(seq, buf):
        for r_ in range(4):
            r = VB(buf) + 4 * r_
            a.vm(f"buffer_load_dwordx4 v[{r}:{r+3}], v{vVO}, s[{SV}:{SV+3}], s{sOFF + seq % U} offen offset:{r_*256} {pol_kv}", f"V{seq}")

    vGR = vT + 15
    def grab_issue():
        a("s_mov_b64 exec, 1")
        a(f"ds_add_rtn_u32 v{vGR}, v{vCA}, v{vC1} offset:{L_CNT}")
        a("s_mov_b64 exec, -1")
    L_LOG = 12544
    vLG = NV1 - 1
    def grab_resolve(seq):
        a("s_waitcnt lgkmcnt(0)")
        a(f"v_readfirstlane_b32 s61, v{vGR}")
        if stamp:
            a(f"v_mov_b32 v{vT+12}, s61")
            a(f"v_mov_b32 v{vT+13}, s100")
            a(f"ds_write_b64 v{vLG}, v[{vT+12}:{vT+13}] offset:{L_LOG}")
            a(f"v_add_u32 v{vLG}, 8, v{vLG}")
            a("s_memrealtime s[100:101]")
        a(f"s_lshl_b32 s{sTMP}, s61, 12")
        a(f"s_add_u32 s{sTMP}, s{sTMP}, s60")
        a("s_cmp_lt_u32 s61, 128")
        a(f"s_cselect_b32 s{sOFF + seq % U}, s{sTMP}, 0x{OOB:x}")

    def reduce_scatter8(regs):
        a("s_nop 2")
        for i in range(4):
            a(f"v_permlane32_swap_b32 v{regs[i]}, v{regs[i+4]}")
        for i in range(4):
            a(f"v_add_f32 v{regs[i]}, v{regs[i]}, v{regs[i+4]}")
        a("s_nop 1")
        for i in range(2):
            a(f"v_permlane16_swap_b32 v{regs[i]}, v{regs[i+2]}")
        for i in range(2):
            a(f"v_add_f32 v{regs[i]}, v{regs[i]}, v{regs[i+2]}")

    def qfrag():
        a(f"v_lshlrev_b32 v{vT}, 3, v0")
        for w in range(4):
            a(f"ds_read_b64 v[{vQ+2*w}:{vQ+2*w+1}], v{vT} offset:{L_QP + w*512}")
        a("s_lshl_b32 s61, s3, 8")
        a(f"v_lshlrev_b32 v{vT+1}, 2, v0")
        a(f"v_add_u32 v{vT+1}, s61, v{vT+1}")
        a(f"v_lshlrev_b32 v{vT+2}, 4, v{vCc}")
        a(f"v_add_u32 v{vT+2}, s61, v{vT+2}")
        a(f"v_lshlrev_b32 v{vT+4}, 4, v{vG}")
        a(f"v_add_u32 v{vT+4}, s61, v{vT+4}")
        a("s_waitcnt lgkmcnt(0)")
        for (x, y) in ((0, 1), (2, 3), (0, 2)):
            a(f"v_add_f32 v{vQ+2*x}, v{vQ+2*x}, v{vQ+2*y}")
            a(f"v_add_f32 v{vQ+2*x+1}, v{vQ+2*x+1}, v{vQ+2*y+1}")
        a(f"v_cvt_pk_bf16_f32 v{vT+3}, v{vQ}, v{vQ+1}")
        a(f"ds_write_b32 v{vT+1}, v{vT+3} offset:{L_QB}")
        a("s_waitcnt lgkmcnt(0)")
        a(f"ds_read_b128 v[{vQc}:{vQc+3}], v{vT+2} offset:{L_QB}")
        for j in range(4):
            a(f"ds_read_b128 v[{vQ+4*j}:{vQ+4*j+3}], v{vT+4} offset:{L_QB + j*64}")
        a(f"v_mov_b32 v{vM}, 0x{f2u(-3.0e38):08x}")
        a(f"v_mov_b32 v{vL}, 0")
        for i in range(8):
            a(f"v_mov_b32 v{vO+i}, 0")
        a("s_waitcnt lgkmcnt(0)")

    def qk(kreg, S, pat="c"):
        if pat == "m":
            for j in range(4):
                c = "0" if j == 0 else f"v[{S}:{S+3}]"
                a(f"v_mfma_f32_16x16x32_bf16 v[{S}:{S+3}], v[{kreg+4*j}:{kreg+4*j+3}], v[{vQ+4*j}:{vQ+4*j+3}], {c}")
            a("s_nop 7")
            return
        for d in range(4):
            for r in range(4):
                c = "0" if d == 0 else f"v{S+r}"
                a(f"v_dot2_f32_bf16 v{S+r}, v{kreg+4*r+d}, v{vQc+d}, {c}")
        a("s_nop 0")
        for rr in (8, 4, 2, 1):
            for r in range(4):
                a(f"v_add_f32_dpp v{S+r}, v{S+r}, v{S+r} row_ror:{rr} row_mask:0xf bank_mask:0xf")

    mN, al, mc, ps, t1, t2, P01, P23 = vT, vT + 1, vT + 2, vT + 4, vT + 8, vT + 9, vT + 10, vT + 11
    pt = [vT + 12, vT + 13, vT + 14, vT + 3]
    def softmax_pv(S, vreg):
        if mimic:
            for h2 in range(2):
                a(f"v_cvt_pk_bf16_f32 v{t1}, v{S+2*h2}, v{S+2*h2+1}")
                a(f"v_lshlrev_b32 v{S+2*h2}, 16, v{t1}")
                a(f"v_and_b32 v{S+2*h2+1}, 0xffff0000, v{t1}")
                a(f"v_mul_f32 v{S+2*h2}, s68, v{S+2*h2}")
                a(f"v_mul_f32 v{S+2*h2+1}, s68, v{S+2*h2+1}")
                a(f"v_cvt_pk_bf16_f32 v{t1}, v{S+2*h2}, v{S+2*h2+1}")
                a(f"v_lshlrev_b32 v{S+2*h2}, 16, v{t1}")
                a(f"v_and_b32 v{S+2*h2+1}, 0xffff0000, v{t1}")
        a(f"v_max3_f32 v{mN}, v{S}, v{S+1}, v{vM}")
        a(f"v_max3_f32 v{mN}, v{S+2}, v{S+3}, v{mN}")
        a(f"v_sub_f32 v{al}, v{vM}, v{mN}")
        a(f"v_mul_f32 v{mc}, s{sC}, v{mN}")
        a(f"v_mul_f32 v{al}, s{sC}, v{al}")
        for i in range(4):
            a(f"v_fma_f32 v{ps+i}, v{S+i}, s{sC}, -v{mc}")
        a(f"v_exp_f32 v{al}, v{al}")
        for i in range(4):
            a(f"v_exp_f32 v{ps+i}, v{ps+i}")
        a(f"v_mov_b32 v{vM}, v{mN}")
        for i in range(8):
            a(f"v_mul_f32 v{vO+i}, v{al}, v{vO+i}")
        a(f"v_cvt_pk_bf16_f32 v{P01}, v{ps}, v{ps+1}")
        a(f"v_cvt_pk_bf16_f32 v{P23}, v{ps+2}, v{ps+3}")
        a(f"v_add_f32 v{t1}, v{ps}, v{ps+1}")
        a(f"v_add_f32 v{t2}, v{ps+2}, v{ps+3}")
        a(f"v_add_f32 v{t1}, v{t1}, v{t2}")
        a(f"v_fma_f32 v{vL}, v{vL}, v{al}, v{t1}")
        for pr, P in ((0, P01), (2, P23)):
            r0, r1 = vreg + 4 * pr, vreg + 4 * (pr + 1)
            for d in range(4):
                tl, th = pt[2 * (d & 1)], pt[2 * (d & 1) + 1]
                a(f"v_perm_b32 v{tl}, v{r1+d}, v{r0+d}, s{sSELLO}")
                a(f"v_perm_b32 v{th}, v{r1+d}, v{r0+d}, s{sSELHI}")
                a(f"v_dot2_f32_bf16 v{vO+2*d}, v{tl}, v{P}, v{vO+2*d}")
                a(f"v_dot2_f32_bf16 v{vO+2*d+1}, v{th}, v{P}, v{vO+2*d+1}")

    vWA = vW + 67
    def wo_setup():
        a(f"v_lshrrev_b32 v{vWA}, 3, v0")
        a(f"v_lshlrev_b32 v{vWA}, 10, v{vWA}")
        a(f"v_and_b32 v{vT+12}, 7, v0")
        a(f"v_lshl_add_u32 v{vWA}, v{vT+12}, 4, v{vWA}")
        a("s_lshl_b32 s83, s62, 17")
        a("s_lshl_b32 s61, s3, 7")
        a("s_add_u32 s83, s83, s61")
    def wo_piece(n, track):
        sl, i = n >> 4, n & 15
        a(f"s_add_u32 m0, s71, {sl*65536 + i*1024}")
        a(f"s_add_u32 s61, s83, {sl*512 + i*8192}")
        ins = f"buffer_load_dwordx4 v{vWA}, s[{SWO}:{SWO+3}], s61 offen lds {pol_w}"
        if track: a.vm(ins, "wo")
        else: a(ins)
    def wo_flag_set():
        a("s_lshl_b32 s61, s3, 2")
        a(f"v_mov_b32 v{vT+12}, s61")
        a(f"ds_write_b32 v{vT+12}, v{vC1} offset:{L_CNT+8}")
    def wo_flag_wait():
        n = npoll[0]; npoll[0] += 1
        a("s_sub_u32 s61, s3, 4")
        a("s_lshl_b32 s61, s61, 2")
        a(f"v_mov_b32 v{vT+1}, s61")
        a.label(f"L1_poll{n}")
        a(f"ds_read_b32 v{vT}, v{vT+1} offset:{L_CNT+8}")
        a("s_waitcnt lgkmcnt(0)")
        a(f"v_readfirstlane_b32 s61, v{vT}")
        a("s_cmp_eq_u32 s61, 1")
        a(f"s_cbranch_scc1 L1_polled{n}")
        a("s_sleep 8")
        a(f"s_branch L1_poll{n}")
        a.label(f"L1_polled{n}")
    npoll = [0]

    Wlo = [None] * 32; Whi = [None] * 32
    def wperm():
        a(f"v_and_b32 v{vT+12}, 31, v0")
        a(f"v_lshrrev_b32 v{vT+13}, 5, v0")
        a(f"v_lshlrev_b32 v{vT+13}, 13, v{vT+13}")
        a(f"v_lshl_add_u32 v{vT+13}, v{vT+12}, 2, v{vT+13}")
        a(f"v_add_u32 v{vT+13}, s71, v{vT+13}")
        free = vW + 64
        for r in range(64):
            a(f"ds_read_b32 v{vW+r}, v{vT+13} offset:{r*128}")
        a("s_waitcnt lgkmcnt(0)")
        for p in range(32):
            r0, r1 = vW + 2 * p, vW + 2 * p + 1
            a(f"v_perm_b32 v{free}, v{r1}, v{r0}, s{sSELLO}")
            a(f"v_perm_b32 v{r1}, v{r1}, v{r0}, s{sSELHI}")
            Wlo[p] = free; Whi[p] = r1
            free = r0
        a(f"s_mov_b32 s{sWP}, 1")

    def young_tiles_issue(n):
        for i in range(n):
            if ypace and i >= ypace:
                a.wait_vm(f"V{i-ypace}")
            issue_K(i, i)
            issue_V(i, i)
    def young_tiles_process(n):
        for i in range(n):
            a.wait_vm(f"K{i}")
            qk(KB(i), vS[0])
            a.wait_vm(f"V{i}")
            softmax_pv(vS[0], VB(i))

    a(f"s_add_u32 s61, s{sB0}, {4*D}")
    a(f"v_mov_b32 v{vT+6}, s61")
    for i in range(7, 12):
        a(f"v_mov_b32 v{vT+i}, 0")
    a(f"ds_write_b64 v{vCA}, v[{vT+6}:{vT+7}] offset:{L_CNT}")
    a(f"ds_write_b128 v{vCA}, v[{vT+8}:{vT+11}] offset:{L_CNT+8}")
    a("s_waitcnt lgkmcnt(0)")
    a("s_barrier")
    def q_wait():
        n = npoll[0]; npoll[0] += 1
        a.label(f"L1_poll{n}")
        a(f"ds_read_b32 v{vT}, v{vCA} offset:{L_CNT+4}")
        a("s_waitcnt lgkmcnt(0)")
        a(f"v_readfirstlane_b32 s61, v{vT}")
        a("s_cmp_ge_u32 s61, 4")
        a(f"s_cbranch_scc1 L1_polled{n}")
        a("s_sleep 1")
        a(f"s_branch L1_poll{n}")
        a.label(f"L1_polled{n}")
    a("s_cmp_lt_u32 s3, 4")
    a("s_cbranch_scc1 L1_pathA")
    a("s_setprio 2")
    a("s_add_u32 s61, s3, 3")
    a("s_and_b32 s61, s61, 3")
    a(f"s_mul_i32 s61, s61, {NT*4096}")
    a(f"s_add_u32 s{sOFF}, s60, s61")
    for k in range(1, NT):
        a(f"s_add_u32 s{sOFF+k}, s{sOFF}, {k*4096}")
    a("s_cmp_eq_u32 s3, 4")
    a("s_cbranch_scc0 L1_pathB")
    a(f"s_cmp_eq_u32 s{sFF}, 1")
    a("s_cbranch_scc0 L1_pathB")

    a.q = []
    fB = vR + (NT - 1) * 32
    fW1, fW2, fX, fA, fT = fB, fB + 32, fB + 64, fB + 72, fB + 88
    assert fT + 4 <= vCA
    a("s_lshr_b32 s61, s2, 3")
    a("s_and_b32 s69, s2, 7")
    a("s_mul_i32 s69, s69, 28")
    a("s_add_u32 s85, s69, s61")
    a("s_mov_b32 s61, 28672")
    a(f"v_mul_lo_u32 v{vT}, v0, s61")
    a(f"v_lshlrev_b32 v{vT+1}, 4, v0")
    for b in range(2):
        a.vm(f"buffer_load_dwordx4 v[{fX+4*b}:{fX+4*b+3}], v{vT+1}, s[{SX}:{SX+3}], 0 offen offset:{b*1024}", "f")
    a("s_lshl_b32 s70, s85, 4")
    for i in range(8):
        if i & 1 == 0:
            a(f"s_add_u32 s61, s70, {i*3584}")
        a.vm(f"buffer_load_dwordx4 v[{fW1+4*i}:{fW1+4*i+3}], v{vT}, s[{SW1}:{SW1+3}], s61 offen offset:{(i&1)*3584} {pol_w}", "f")
    a("s_lshl_b32 s70, s85, 13")
    for j in range(8):
        if j & 3 == 0:
            a(f"s_add_u32 s61, s70, {j*1024}")
        a.vm(f"buffer_load_dwordx4 v[{fW2+4*j}:{fW2+4*j+3}], v{vT+1}, s[{SW2}:{SW2+3}], s61 offen offset:{(j&3)*1024} {pol_w}", "f")
    young_tiles_issue(NT - 1)
    q_wait()
    qfrag()
    STAMP(1)
    young_tiles_process(NT - 1)
    for i in range(16):
        a(f"v_mov_b32 v{fA+i}, 0")
    def f_compute(W, xs):
        for p in range(4):
            r0, r1 = W + 8 * p, W + 8 * p + 4
            for d in range(4):
                tl, th = fT + 2 * (d & 1), fT + 1 + 2 * (d & 1)
                a(f"v_perm_b32 v{tl}, v{r1+d}, v{r0+d}, s{sSELLO}")
                a(f"v_perm_b32 v{th}, v{r1+d}, v{r0+d}, s{sSELHI}")
                for b in range(2):
                    a(f"v_dot2_f32_bf16 v{fA+b*8+2*d}, v{tl}, {xs(b,p)}, v{fA+b*8+2*d}")
                    a(f"v_dot2_f32_bf16 v{fA+b*8+2*d+1}, v{th}, {xs(b,p)}, v{fA+b*8+2*d+1}")
    f_compute(fW1, lambda b, p: f"v{fX+4*b+p}")
    a("s_nop 2")
    for i in range(8):
        a(f"v_permlane32_swap_b32 v{fA+i}, v{fA+i+8}")
    for i in range(8):
        a(f"v_add_f32 v{fA+i}, v{fA+i}, v{fA+i+8}")
    a("s_nop 1")
    for i in range(4):
        a(f"v_permlane16_swap_b32 v{fA+i}, v{fA+i+4}")
    for i in range(4):
        a(f"v_add_f32 v{fA+i}, v{fA+i}, v{fA+i+4}")
    for rr in (8, 4, 2, 1):
        a("s_nop 1")
        for i in range(4):
            a(f"v_add_f32_dpp v{fA+i}, v{fA+i}, v{fA+i} row_ror:{rr} row_mask:0xf bank_mask:0xf")
    for i in range(4):
        a(f"v_cvt_pk_bf16_f32 v{fA+i}, v{fA+i}, v{fA+i}")
    for i in range(4):
        a(f"v_lshlrev_b32 v{fA+i}, 16, v{fA+i}")
    for i in range(4):
        a(f"v_mul_f32 v{fA+4+i}, 0x{f2u(-LOG2E):08x}, v{fA+i}")
    for i in range(4):
        a(f"v_exp_f32 v{fA+4+i}, v{fA+4+i}")
    a("s_nop 0")
    for i in range(4):
        a(f"v_add_f32 v{fA+4+i}, 1.0, v{fA+4+i}")
    for i in range(4):
        a(f"v_rcp_f32 v{fA+4+i}, v{fA+4+i}")
    a("s_nop 0")
    for i in range(4):
        a(f"v_mul_f32 v{fA+i}, v{fA+i}, v{fA+4+i}")
    a(f"v_cvt_pk_bf16_f32 v{fA+8}, v{fA}, v{fA+1}")
    a(f"v_cvt_pk_bf16_f32 v{fA+9}, v{fA+2}, v{fA+3}")
    a("s_nop 0")
    sH = 72
    for g in range(4):
        for k in range(2):
            a(f"v_readlane_b32 s{sH + (g>>1)*4 + (g&1)*2 + k}, v{fA+8+k}, {16*g}")
    for i in range(16):
        a(f"v_mov_b32 v{fA+i}, 0")
    f_compute(fW2, lambda b, p: f"s{sH+4*b+p}")
    fK = vR + 64
    a("s_nop 2")
    for i in range(16):
        a(f"v_mov_b32 v{fK+i}, v{fA+i}")
    a(f"v_lshrrev_b32 v{fK+16}, 1, v0")
    a(f"v_lshlrev_b32 v{fK+16}, 14, v{fK+16}")
    a(f"v_and_b32 v{fK+17}, 1, v0")
    a(f"v_lshl_add_u32 v{fK+16}, v{fK+17}, 5, v{fK+16}")
    a("s_mov_b32 s84, 1")
    a("s_branch L1_yexit")

    a.q = []
    a.label("L1_pathB")
    young_tiles_issue(NT)
    q_wait()
    qfrag()
    STAMP(1)
    young_tiles_process(NT)
    a.label("L1_yexit")
    STAMP(2)
    wo_flag_wait()
    wperm()
    a("s_branch L1_comb")

    a.q = []
    a.label("L1_pathA")
    a("s_setprio 3")
    vX = vW
    a(f"v_lshlrev_b32 v{vT}, 6, v{vG}")
    a("s_lshl_b32 s61, s63, 10")
    a("s_lshl_b32 s69, s3, 8")
    a("s_add_u32 s61, s61, s69")
    for k in range(4):
        a.vm(f"buffer_load_dwordx4 v[{vX+4*k}:{vX+4*k+3}], v{vT}, s[{SX}:{SX+3}], s61 offen offset:{16*k}", "x")
    a(f"v_lshlrev_b32 v{vT+1}, 4, v{vCc}")
    a(f"v_lshl_add_u32 v{vT+1}, v{vG}, 18, v{vT+1}")
    a("s_lshl_b32 s61, s3, 20")
    a("s_lshl_b32 s69, s62, 8")
    a("s_add_u32 s61, s61, s69")
    for i in range(32):
        if i > 0:
            a("s_add_u32 s61, s61, 8192")
        r = vR + 4 * i
        a.vm(f"buffer_load_dwordx4 v[{r}:{r+3}], v{vT+1}, s[{SWQ}:{SWQ+3}], s61 offen {pol_w}", f"wq{i}")
    acc = [vS[0] + i for i in range(4)] + [vS[1] + i for i in range(4)]
    for i in range(8):
        a(f"v_mov_b32 v{acc[i]}, 0")
    a(f"s_add_u32 s61, s{sB0}, s3")
    a("s_lshl_b32 s61, s61, 12")
    a(f"s_add_u32 s{sOFF}, s60, s61")
    for k in range(1, D):
        a(f"s_add_u32 s{sOFF+k}, s{sOFF}, {k*4*4096}")
    for p in range(16):
        a.wait_vm("x", f"wq{2*p+1}")
        r0 = vR + 8 * p; r1 = r0 + 4
        for d in range(4):
            tl, th = vT + 2 + 2 * (d & 1), vT + 3 + 2 * (d & 1)
            a(f"v_perm_b32 v{tl}, v{r1+d}, v{r0+d}, s{sSELLO}")
            a(f"v_perm_b32 v{th}, v{r1+d}, v{r0+d}, s{sSELHI}")
            a(f"v_dot2_f32_bf16 v{acc[2*d]}, v{tl}, v{vX+p}, v{acc[2*d]}")
            a(f"v_dot2_f32_bf16 v{acc[2*d+1]}, v{th}, v{vX+p}, v{acc[2*d+1]}")
    reduce_scatter8(acc)
    a(f"ds_write_b64 v{vLD}, v[{acc[0]}:{acc[1]}] offset:{L_QP}")
    a("s_waitcnt lgkmcnt(0)")
    a("s_mov_b64 exec, 1")
    a(f"ds_add_u32 v{vCA}, v{vC1} offset:{L_CNT+4}")
    a("s_mov_b64 exec, -1")
    a.q = []
    q_wait()
    qfrag()
    a("s_setprio 0")
    STAMP(1)
    if stamp:
        a("s_lshl_b32 s61, s3, 9")
        a(f"v_mov_b32 v{vLG}, s61")
        a("s_memrealtime s[100:101]")
    grab_issue()
    for t in range(D):
        issue_K(t, t)
        issue_V(t, t)
    wo_setup()
    npeel = -(-32 // (U * wo_per_step))
    def patof(seq):
        if seq < npeel * U: return kpeel[seq % len(kpeel)]
        return kpat[(seq % U) % len(kpat)]
    assert U % len(kpat) == 0
    piece = 0
    for ps_ in range(npeel):
        for k in range(U):
            seq = ps_ * U + k
            grab_resolve(k + D)
            grab_issue()
            issue_K(seq + D, (k + D) % NB, patof(seq + D))
            issue_V(seq + D, (k + D) % NB)
            for _ in range(wo_per_step):
                if piece < 32:
                    wo_piece(piece, True); piece += 1
            buf = k % NB
            a.wait_vm(f"K{seq}")
            qk(KB(buf), vS[0], patof(seq) if seq >= D else "c")
            a.wait_vm(f"V{seq}")
            softmax_pv(vS[0], VB(buf))
            a(f"s_cmp_eq_u32 s{sOFF + (k+1) % U}, 0x{OOB:x}")
            a("s_cbranch_scc1 L1_exit")
    a("s_mov_b32 s82, 1")
    a.label("L1_body")
    for k in range(U):
        grab_resolve(k + D)
        grab_issue()
        issue_K(k + D, (k + D) % NB, patof(npeel * U + k + D))
        issue_V(k + D, (k + D) % NB)
        buf = k % NB
        a(f"s_waitcnt vmcnt({8*D+4})")
        qk(KB(buf), vS[0], patof(npeel * U + k))
        a(f"s_waitcnt vmcnt({8*D})")
        softmax_pv(vS[0], VB(buf))
        a(f"s_cmp_eq_u32 s{sOFF + (k+1) % U}, 0x{OOB:x}")
        a("s_cbranch_scc1 L1_exit")
    a(f"s_cmp_eq_u32 s{sWP}, 1")
    a("s_cbranch_scc1 L1_body")
    a("s_waitcnt lgkmcnt(0)")
    wo_flag_set()
    wperm()
    a("s_branch L1_body")
    a.label("L1_exit")
    STAMP(2)
    a(f"s_cmp_eq_u32 s{sWP}, 1")
    a("s_cbranch_scc1 L1_comb")
    a("s_cmp_eq_u32 s82, 1")
    a("s_cbranch_scc1 L1_wo_issued")
    for n in range(32):
        wo_piece(n, False)
    a.label("L1_wo_issued")
    a("s_waitcnt vmcnt(0) lgkmcnt(0)")
    wo_flag_set()
    wperm()
    a.label("L1_comb")

    x1, x2, MW, f = vT, vT + 1, vT + 2, vT + 3
    a(f"v_mov_b32 v{x1}, v{vM}")
    a(f"v_mov_b32 v{x2}, v{vM}")
    a("s_nop 1")
    a(f"v_permlane32_swap_b32 v{x1}, v{x2}")
    a(f"v_max_f32 v{x1}, v{x1}, v{x2}")
    a(f"v_mov_b32 v{x2}, v{x1}")
    a("s_nop 1")
    a(f"v_permlane16_swap_b32 v{x1}, v{x2}")
    a(f"v_max_f32 v{MW}, v{x1}, v{x2}")
    a(f"v_sub_f32 v{f}, v{vM}, v{MW}")
    a(f"v_mul_f32 v{f}, s{sC}, v{f}")
    a(f"v_exp_f32 v{f}, v{f}")
    a("s_nop 0")
    a(f"v_mul_f32 v{x1}, v{f}, v{vL}")
    a(f"v_mul_f32 v{x2}, v{f}, v{vL}")
    for i in range(8):
        a(f"v_mul_f32 v{vO+i}, v{f}, v{vO+i}")
    a(f"v_permlane32_swap_b32 v{x1}, v{x2}")
    a(f"v_add_f32 v{x1}, v{x1}, v{x2}")
    a(f"v_mov_b32 v{x2}, v{x1}")
    a("s_nop 1")
    a(f"v_permlane16_swap_b32 v{x1}, v{x2}")
    a(f"v_add_f32 v{MW+1}, v{x1}, v{x2}")
    reduce_scatter8([vO + i for i in range(8)])
    a(f"ds_write_b64 v{vLD}, v[{vO}:{vO+1}] offset:{L_OP}")
    a("s_lshl_b32 s61, s3, 3")
    a(f"v_mov_b32 v{x1}, s61")
    a(f"ds_write_b64 v{x1}, v[{MW}:{MW+1}] offset:{L_ML}")
    aOP, aPW, aPR, aY = vM, vL, vS[0], vKO
    a(f"v_lshlrev_b32 v{aOP}, 3, v0")
    a("s_lshl_b32 s61, s3, 9")
    a(f"s_add_u32 s61, s61, {L_P}")
    a(f"v_lshlrev_b32 v{aPW}, 2, v0")
    a(f"v_add_u32 v{aPW}, s61, v{aPW}")
    a(f"v_lshrrev_b32 v{aPR}, 5, v0")
    a(f"v_lshlrev_b32 v{aPR}, 7, v{aPR}")
    a(f"v_add_u32 v{aPR}, s61, v{aPR}")
    a(f"v_and_b32 v{x2}, 31, v0")
    a(f"v_lshrrev_b32 v{vT+4}, 3, v{x2}")
    a(f"v_lshlrev_b32 v{aY}, 13, v{vT+4}")
    a(f"v_and_b32 v{x2}, 7, v{x2}")
    a(f"v_lshl_add_u32 v{aY}, v{x2}, 3, v{aY}")
    a(f"v_lshrrev_b32 v{x2}, 5, v0")
    a(f"v_lshl_add_u32 v{aY}, v{x2}, 2, v{aY}")
    a("s_lshl_b32 s61, s63, 5")
    a("s_lshl_b32 s69, s3, 2")
    a("s_add_u32 s61, s61, s69")
    a("s_lshl_b32 s61, s61, 13")
    a("s_lshl_b32 s69, s62, 2")
    a("s_add_u32 s69, s69, s64")
    a("s_lshl_b32 s70, s69, 6")
    a("s_add_u32 s60, s61, s70")
    a("s_waitcnt vmcnt(0) lgkmcnt(0)")
    a("s_barrier")
    STAMP(4)
    a(f"v_mov_b32 v{x1}, 0")
    for i in range(4):
        a(f"ds_read_b128 v[{vQ+4*i}:{vQ+4*i+3}], v{x1} offset:{L_ML + 16*i}")
    op = [vR + 2 * w for w in range(8)]
    for w in range(8):
        a(f"ds_read_b64 v[{op[w]}:{op[w]+1}], v{aOP} offset:{L_OP + w*512}")
    a("s_waitcnt lgkmcnt(8)")
    Mt, Lt = vT + 4, vT + 5
    a(f"v_max3_f32 v{Mt}, v{vQ}, v{vQ+2}, v{vQ+4}")
    a(f"v_max3_f32 v{Mt}, v{vQ+6}, v{vQ+8}, v{Mt}")
    a(f"v_max3_f32 v{Mt}, v{vQ+10}, v{vQ+12}, v{Mt}")
    a(f"v_max_f32 v{Mt}, v{vQ+14}, v{Mt}")
    for w in range(8):
        a(f"v_sub_f32 v{vQ+2*w}, v{vQ+2*w}, v{Mt}")
    for w in range(8):
        a(f"v_mul_f32 v{vQ+2*w}, s{sC}, v{vQ+2*w}")
    for w in range(8):
        a(f"v_exp_f32 v{vQ+2*w}, v{vQ+2*w}")
    a("s_waitcnt lgkmcnt(0)")
    o0, o1, hi, lo = vT + 6, vT + 7, vT + 8, vT + 9
    a(f"v_mul_f32 v{o0}, v{vQ}, v{op[0]}")
    a(f"v_mul_f32 v{o1}, v{vQ}, v{op[0]+1}")
    for w in range(1, 8):
        a(f"v_fma_f32 v{o0}, v{vQ+2*w}, v{op[w]}, v{o0}")
        a(f"v_fma_f32 v{o1}, v{vQ+2*w}, v{op[w]+1}, v{o1}")
    a(f"v_cvt_pk_bf16_f32 v{hi}, v{o0}, v{o1}")
    a(f"v_lshlrev_b32 v{x1}, 16, v{hi}")
    a(f"v_and_b32 v{x2}, 0xffff0000, v{hi}")
    a(f"v_sub_f32 v{o0}, v{o0}, v{x1}")
    a(f"v_sub_f32 v{o1}, v{o1}, v{x2}")
    a(f"v_cvt_pk_bf16_f32 v{lo}, v{o0}, v{o1}")
    a(f"ds_write_b32 v{aPW}, v{hi}")
    a(f"ds_write_b32 v{aPW}, v{lo} offset:256")
    a(f"v_mul_f32 v{Lt}, v{vQ}, v{vQ+1}")
    for w in range(1, 8):
        a(f"v_fma_f32 v{Lt}, v{vQ+2*w}, v{vQ+2*w+1}, v{Lt}")
    a("s_waitcnt lgkmcnt(0)")
    OH, OL = vR, vR + 32
    for k in range(8):
        a(f"ds_read_b128 v[{OH+4*k}:{OH+4*k+3}], v{aPR} offset:{16*k}")
    for k in range(8):
        a(f"ds_read_b128 v[{OL+4*k}:{OL+4*k+3}], v{aPR} offset:{256+16*k}")
    ac = [vO + i for i in range(8)]
    for k in range(8):
        a(f"s_waitcnt lgkmcnt({15 - k})")
        for p in range(4 * k, 4 * k + 4):
            j = 2 * (p & 1)
            c0 = "0" if p < 2 else f"v{ac[j]}"
            c1 = "0" if p < 2 else f"v{ac[j+1]}"
            a(f"v_dot2_f32_bf16 v{ac[j]}, v{Wlo[p]}, v{OH+p}, {c0}")
            a(f"v_dot2_f32_bf16 v{ac[j+1]}, v{Whi[p]}, v{OH+p}, {c1}")
    for k in range(8):
        a(f"s_waitcnt lgkmcnt({7 - k})")
        for p in range(4 * k, 4 * k + 4):
            j = 4 + 2 * (p & 1)
            c0 = "0" if p < 2 else f"v{ac[j]}"
            c1 = "0" if p < 2 else f"v{ac[j+1]}"
            a(f"v_dot2_f32_bf16 v{ac[j]}, v{Wlo[p]}, v{OL+p}, {c0}")
            a(f"v_dot2_f32_bf16 v{ac[j+1]}, v{Whi[p]}, v{OL+p}, {c1}")
    a("s_nop 2")
    a(f"v_add_f32 v{ac[0]}, v{ac[0]}, v{ac[2]}")
    a(f"v_add_f32 v{ac[1]}, v{ac[1]}, v{ac[3]}")
    a(f"v_add_f32 v{ac[4]}, v{ac[4]}, v{ac[6]}")
    a(f"v_add_f32 v{ac[5]}, v{ac[5]}, v{ac[7]}")
    a(f"v_add_f32 v{ac[0]}, v{ac[0]}, v{ac[4]}")
    a(f"v_add_f32 v{ac[1]}, v{ac[1]}, v{ac[5]}")
    a("s_nop 1")
    a(f"v_permlane32_swap_b32 v{ac[0]}, v{ac[1]}")
    a(f"v_add_f32 v{ac[0]}, v{ac[0]}, v{ac[1]}")
    a(f"buffer_store_dword v{ac[0]}, v{aY}, s[{SWS}:{SWS+3}], s60 offen")
    STAMP(3)
    STAMP_STORE(6, ["s_lshl_b32 s61, s2, 4", "s_add_u32 s61, s61, s3", "s_lshl_b32 s61, s61, 5"], SWS, vQ)
    if stamp:
        a("s_cmp_ge_u32 s3, 4")
        a("s_cbranch_scc1 L1_nolog")
        a("s_lshl_b32 s61, s3, 9")
        a(f"v_lshlrev_b32 v{vQ}, 3, v0")
        a(f"v_add_u32 v{vQ+1}, s61, v{vQ}")
        a(f"ds_read_b64 v[{vQ+2}:{vQ+3}], v{vQ+1} offset:{L_LOG}")
        a("s_lshl_b32 s70, s2, 11")
        a("s_add_u32 s61, s61, s70")
        a(f"s_add_u32 s61, s61, {WS_ST + 262144}")
        a("s_waitcnt lgkmcnt(0)")
        a(f"buffer_store_dwordx2 v[{vQ+2}:{vQ+3}], v{vQ}, s[{SWS}:{SWS+3}], s61 offen")
        a.label("L1_nolog")
    a("s_cmp_eq_u32 s84, 1")
    a("s_cbranch_scc0 L1_noffn")
    a("s_lshl_b32 s61, s85, 6")
    a(f"s_add_u32 s61, s61, {WS_BP}")
    a(f"s_add_u32 s70, s61, {32*256*64}")
    for b in range(2):
        so = "s61" if b == 0 else "s70"
        a(f"buffer_store_dwordx4 v[{fK+b*8}:{fK+b*8+3}], v{fK+16}, s[{SWS}:{SWS+3}], {so} offen")
        a(f"buffer_store_dwordx4 v[{fK+b*8+4}:{fK+b*8+7}], v{fK+16}, s[{SWS}:{SWS+3}], {so} offen offset:16")
    a.label("L1_noffn")
    a("s_cmp_lg_u32 s3, 0")
    a("s_cbranch_scc1 L1_done")
    a("s_lshl_b32 s61, s63, 7")
    a("s_add_u32 s61, s61, s69")
    a("s_lshl_b32 s61, s61, 3")
    a(f"s_add_u32 s61, s61, {WS_ML}")
    a(f"v_mov_b32 v{x1}, 0")
    a("v_cmp_eq_u32 vcc, 0, v0")
    a("s_and_saveexec_b64 s[70:71], vcc")
    assert Mt % 2 == 0 and Lt == Mt + 1
    a(f"buffer_store_dwordx2 v[{Mt}:{Lt}], v{x1}, s[{SWS}:{SWS+3}], s61 offen")
    a.label("L1_done")
    a("s_endpgm")

    a.q = []
    a.raw(".globl fin_kernel")
    a.raw(".p2align 8")
    a.raw(".type fin_kernel,@function")
    a.label("fin_kernel")
    a("s_cmp_ge_u32 s2, 64")
    a("s_cbranch_scc1 L2_done")
    STAMP(0)
    a("s_load_dwordx2 s[4:5], s[0:1], 0")
    a("s_load_dwordx8 s[20:27], s[0:1], 64")
    a("v_lshrrev_b32 v1, 6, v0")
    a("v_and_b32 v2, 15, v0")
    a("v_lshrrev_b32 v3, 4, v0")
    a("v_readfirstlane_b32 s3, v1")
    a("s_lshr_b32 s63, s2, 5")
    a("v_lshlrev_b32 v4, 2, v2")
    a("v_lshl_add_u32 v4, v3, 9, v4")
    a("v_lshlrev_b32 v5, 6, v3")
    a("v_mul_u32_u24 v6, 896, v3")
    a("v_lshl_add_u32 v6, v2, 2, v6")
    a("v_lshlrev_b32 v7, 2, v0")
    a("s_lshl_b32 s60, s2, 13")
    a("s_lshl_b32 s61, s63, 10")
    a(f"s_add_u32 s62, s61, {WS_ML}")
    a("s_lshl_b32 s64, s2, 14")
    a(f"s_add_u32 s64, s64, {WS_BP}")
    a("s_waitcnt lgkmcnt(0)")
    srd(SWS, 26, WS_BYTES)
    srd(SX, 4, 2048)
    srd(32, 20, 1024)
    srd(36, 22, 2048)
    ML = 24
    for i in range(4):
        a.vm(f"buffer_load_dwordx4 v[{ML+4*i}:{ML+4*i+3}], v5, s[{SWS}:{SWS+3}], s62 offen offset:{i*16}", "ml")
    Y = 16
    for i in range(8):
        a.vm(f"buffer_load_dword v{Y+i}, v4, s[{SWS}:{SWS+3}], s60 offen offset:{i*64}", "y")
    BP = 40
    for i in range(14):
        a.vm(f"buffer_load_dword v{BP+i}, v6, s[{SWS}:{SWS+3}], s64 offen offset:{i*64}", "bp")
    a.vm(f"buffer_load_dword v54, v7, s[{SX}:{SX+3}], s61 offen", "g")
    a.vm("buffer_load_dword v55, v7, s[32:35], 0 offen", "g")
    sC2 = 67
    a(f"s_mov_b32 s{sC2}, 0x{f2u(LOG2E if mimic else LOG2E * SCALE):08x}")
    a.wait_vm("ml")
    for hh in range(2):
        B = ML + hh * 8
        Mx, Ls = 8 + hh * 2, 9 + hh * 2
        a(f"v_max3_f32 v{Mx}, v{B}, v{B+2}, v{B+4}")
        a(f"v_max_f32 v{Mx}, v{B+6}, v{Mx}")
        for s_ in range(4):
            a(f"v_sub_f32 v{B+2*s_}, v{B+2*s_}, v{Mx}")
        for s_ in range(4):
            a(f"v_mul_f32 v{B+2*s_}, s{sC2}, v{B+2*s_}")
        for s_ in range(4):
            a(f"v_exp_f32 v{B+2*s_}, v{B+2*s_}")
        a("s_nop 0")
        a(f"v_mul_f32 v{Ls}, v{B}, v{B+1}")
        for s_ in range(1, 4):
            a(f"v_fma_f32 v{Ls}, v{B+2*s_}, v{B+2*s_+1}, v{Ls}")
        a(f"v_rcp_f32 v{Ls}, v{Ls}")
    a.wait_vm("y")
    for hh in range(2):
        B = ML + hh * 8
        Mx = 8 + hh * 2
        a(f"v_mul_f32 v{Mx}, v{B}, v{Y+hh*4}")
        for s_ in range(1, 4):
            a(f"v_fma_f32 v{Mx}, v{B+2*s_}, v{Y+hh*4+s_}, v{Mx}")
    a("v_mul_f32 v12, v8, v9")
    a("v_fma_f32 v12, v10, v11, v12")
    a.wait_vm("bp")
    for i in range(7):
        a(f"v_add_f32 v{BP+2*i}, v{BP+2*i}, v{BP+2*i+1}")
    a(f"v_add_f32 v{BP}, v{BP}, v{BP+2}")
    a(f"v_add_f32 v{BP+4}, v{BP+4}, v{BP+6}")
    a(f"v_add_f32 v{BP+8}, v{BP+8}, v{BP+10}")
    a(f"v_add_f32 v{BP}, v{BP}, v{BP+4}")
    a(f"v_add_f32 v{BP+8}, v{BP+8}, v{BP+12}")
    a(f"v_add_f32 v13, v{BP}, v{BP+8}")
    a.wait_vm("g")
    a("v_lshlrev_b32 v56, 16, v54")
    a("v_and_b32 v57, 0xffff0000, v54")
    a("v_lshlrev_b32 v58, 16, v55")
    a("v_and_b32 v59, 0xffff0000, v55")
    a("v_mul_f32 v56, v56, v58")
    a("v_mul_f32 v57, v57, v59")
    a("v_cvt_pk_bf16_f32 v56, v56, v57")
    a("v_lshlrev_b32 v57, 16, v56")
    a("v_and_b32 v56, 0xffff0000, v56")
    a("v_add_f32 v14, v56, v57")
    a("v_permlane32_swap_b32 v12, v13")
    a("v_add_f32 v12, v12, v13")
    a("v_mov_b32 v13, v12")
    a("v_mov_b32 v15, v14")
    a("s_nop 0")
    a("v_permlane16_swap_b32 v12, v13")
    a("v_permlane32_swap_b32 v14, v15")
    a("v_add_f32 v12, v12, v13")
    a("v_add_f32 v14, v14, v15")
    a("v_mov_b32 v15, v14")
    a("s_nop 1")
    a("v_permlane16_swap_b32 v14, v15")
    a("v_add_f32 v14, v14, v15")
    for rr in (8, 4, 2, 1):
        a("s_nop 1")
        a(f"v_add_f32_dpp v14, v14, v14 row_ror:{rr} row_mask:0xf bank_mask:0xf")
    a("v_and_b32 v4, 63, v0")
    a("v_lshrrev_b32 v5, 5, v4")
    a("v_lshlrev_b32 v5, 6, v5")
    a("v_lshl_add_u32 v5, v2, 2, v5")
    a("s_lshl_b32 s61, s3, 7")
    a("v_add_u32 v5, s61, v5")
    a("ds_write_b32 v5, v12")
    a("s_lshl_b32 s61, s3, 2")
    a("v_mov_b32 v6, s61")
    a("ds_write_b32 v6, v14 offset:512")
    a("s_waitcnt lgkmcnt(0)")
    a("s_barrier")
    a("s_cmp_lg_u32 s3, 0")
    a("s_cbranch_scc1 L2_done")
    a("v_lshlrev_b32 v5, 2, v2")
    for w in range(4):
        a(f"ds_read_b32 v{16+w}, v5 offset:{w*128}")
        a(f"ds_read_b32 v{20+w}, v5 offset:{w*128+64}")
    a("v_mov_b32 v6, 0")
    a("ds_read_b128 v[24:27], v6 offset:512")
    a("s_waitcnt lgkmcnt(0)")
    a("v_add_f32 v16, v16, v17"); a("v_add_f32 v18, v18, v19"); a("v_add_f32 v16, v16, v18")
    a("v_add_f32 v20, v20, v21"); a("v_add_f32 v22, v22, v23"); a("v_add_f32 v20, v20, v22")
    a("v_add_f32 v24, v24, v25"); a("v_add_f32 v26, v26, v27"); a("v_add_f32 v24, v24, v26")
    def rbf(r):
        a(f"v_cvt_pk_bf16_f32 v{r}, v{r}, v{r}")
        a(f"v_lshlrev_b32 v{r}, 16, v{r}")
    rbf(16); rbf(20); rbf(24)
    a(f"v_mul_f32 v24, 0x{f2u(-LOG2E):08x}, v24")
    a("v_exp_f32 v24, v24")
    a("s_nop 0")
    a("v_add_f32 v24, 1.0, v24")
    a("v_rcp_f32 v24, v24")
    a("s_nop 0")
    rbf(24)
    a("v_sub_f32 v25, 1.0, v24")
    rbf(25)
    a("v_mul_f32 v16, v24, v16"); rbf(16)
    a("v_mul_f32 v20, v25, v20"); rbf(20)
    a("v_add_f32 v16, v16, v20")
    a("v_cvt_pk_bf16_f32 v16, v16, v16")
    a("s_lshl_b32 s61, s2, 5")
    a("v_lshlrev_b32 v5, 1, v2")
    a("v_cmp_gt_u32 vcc, 16, v0")
    a("s_and_saveexec_b64 s[70:71], vcc")
    a("buffer_store_short v16, v5, s[36:39], s61 offen")
    STAMP(1)
    STAMP_STORE(2, ["s_lshl_b32 s61, s2, 4", "s_add_u32 s61, s61, 131072"], SWS, 40)
    a.label("L2_done")
    a("s_endpgm")

    a.raw('.section .rodata,"a"')
    def kd(name, nv):
        a.raw(".p2align 6")
        a.raw(f".amdhsa_kernel {name}")
        a.raw(f"  .amdhsa_next_free_vgpr {nv}")
        a.raw("  .amdhsa_next_free_sgpr 102")
        a.raw(f"  .amdhsa_accum_offset {(nv+3)//4*4}")
        a.raw("  .amdhsa_group_segment_fixed_size 0")
        a.raw("  .amdhsa_kernarg_size 96")
        a.raw("  .amdhsa_user_sgpr_count 2")
        a.raw("  .amdhsa_user_sgpr_kernarg_segment_ptr 1")
        a.raw("  .amdhsa_system_sgpr_workgroup_id_x 1")
        a.raw(".end_amdhsa_kernel")
    kd("attn_kernel", NV1)
    kd("fin_kernel", 64)
    return "\n".join(a.L) + "\n"

if __name__ == "__main__":
    import argparse
    ap = argparse.ArgumentParser()
    ap.add_argument("-o", default=f"cdna_kernels/{KN}.s")
    ap.add_argument("--pol_kv", default="nt")
    ap.add_argument("--pol_w", default="")
    ap.add_argument("--nb", type=int, default=4)
    ap.add_argument("--nt", type=int, default=4)
    ap.add_argument("--mimic", action="store_true")
    ap.add_argument("--stamp", action="store_true")
    ap.add_argument("--ypace", type=int, default=2)
    ap.add_argument("--wops", type=int, default=2)
    ap.add_argument("--kpat", default="mc")
    ap.add_argument("--kpeel", default="c")
    args = ap.parse_args()
    open(args.o, "w").write(gen(pol_kv=args.pol_kv, pol_w=args.pol_w, NB=args.nb, NT=args.nt, mimic=args.mimic,
                                stamp=args.stamp, ypace=args.ypace, wo_per_step=args.wops, kpat=args.kpat, kpeel=args.kpeel))
```

```python
import sys, math, struct

KN = "gated_mix__mha_block_cached__dense_activation_silu__decode"

def f2u(x):
    return struct.unpack("<I", struct.pack("<f", x))[0]

class Asm:
    def __init__(self):
        self.L = []
        self.q = []
    def __call__(self, s):
        self.L.append("  " + s)
    def label(self, s):
        self.L.append(s + ":")
    def raw(self, s):
        self.L.append(s)
    def vm(self, s, tag):
        self.L.append("  " + s)
        self.q.append(tag)
    def wait_vm(self, *tags):
        last = -1
        for i, t in enumerate(self.q):
            if t in tags:
                last = i
        if last < 0:
            return
        n = len(self.q) - 1 - last
        assert n <= 63, n
        self.L.append(f"  s_waitcnt vmcnt({n})")
        self.q = self.q[last + 1:]

WS_Y = 0
WS_ML = 512 * 1024
WS_BP = 1024 * 1024
WS_ST = 4 * 1024 * 1024
WS_BYTES = 536870912

LOG2E = 1.4426950408889634
SCALE = 128 ** -0.5
OOB = 0x40000000

def gen(pol_kv="nt", pol_w="", NB=4, NT=4, mimic=False, stamp=False, ypace=2, wo_per_step=2, kpat="mc", kpeel="c", dbg=False):
    a = Asm()
    D = NB - 1
    U = {2: 4, 3: 6, 4: 4}[NB]
    def STAMP(k):
        if stamp or dbg:
            a(f"s_memrealtime s[{90+2*k}:{91+2*k}]")
    def STAMP_STORE(n, base_expr_lines, srd, vtmp):
        if not stamp: return
        a("s_waitcnt lgkmcnt(0)")
        for l in base_expr_lines: a(l)
        a(f"s_add_u32 s61, s61, {WS_ST}")
        for k in range(n):
            a(f"v_mov_b32 v{vtmp+1+k}, s{90+2*k}")
        a(f"v_mov_b32 v{vtmp}, 0")
        for k in range(n):
            a(f"buffer_store_dword v{vtmp+1+k}, v{vtmp}, s[{srd}:{srd+3}], s61 offen offset:{4*k}")

    hdr = open(f"cdna_kernels/{KN}.s.ref").read().split("; Override launch")[0]
    a.raw(hdr.rstrip())
    a.raw("; @launch kernel=attn_kernel grid=(256,1,1) block=(512,1,1) lds=147456")
    a.raw("; @launch kernel=fin_kernel grid=(64,1,1) block=(256,1,1) lds=1024")
    a.raw('.amdgcn_target "amdgcn-amd-amdhsa--gfx950"')
    a.raw(".text")

    a.raw(".globl attn_kernel")
    a.raw(".p2align 8")
    a.raw(".type attn_kernel,@function")
    a.label("attn_kernel")
    a("s_cmp_ge_u32 s2, 256")
    a("s_cbranch_scc1 L1_done")
    STAMP(0)
    a("s_load_dwordx16 s[4:19], s[0:1], 0")
    a("s_load_dwordx8 s[20:27], s[0:1], 64")
    a("v_lshrrev_b32 v1, 6, v0")
    a("v_and_b32 v0, 63, v0")
    a("s_nop 0")
    a("v_readfirstlane_b32 s3, v1")
    sSELLO, sSELHI, sC = 65, 66, 67
    a(f"s_mov_b32 s{sSELLO}, 0x05040100")
    a(f"s_mov_b32 s{sSELHI}, 0x07060302")
    if mimic:
        a(f"s_mov_b32 s{sC}, 0x{f2u(LOG2E):08x}")
        a(f"s_mov_b32 s68, 0x{f2u(SCALE):08x}")
    else:
        a(f"s_mov_b32 s{sC}, 0x{f2u(LOG2E * SCALE):08x}")
    a("s_and_b32 s60, s2, 7")
    a("s_lshr_b32 s61, s2, 3")
    a("s_and_b32 s62, s61, 3")
    a("s_lshl_b32 s62, s62, 3")
    a("s_add_u32 s62, s62, s60")
    a("s_lshr_b32 s61, s61, 2")
    a("s_lshr_b32 s63, s61, 2")
    a("s_and_b32 s64, s61, 3")

    vG, vCc, vKO, vVO = 1, 2, 3, 4
    vM, vL, vLD = 5, 6, 7
    vT = 8
    vQ = 24
    vO = 40
    vS = [48, 52]
    vQc = 52
    vR = 56
    vW = vR + 128
    vCA, vC1 = vW + 65, vW + 66
    NV1 = vW + 70
    assert NV1 <= 256 and NB <= 4 and NT <= 4
    def KB(buf): return vR + buf * 32
    def VB(buf): return vR + buf * 32 + 16

    L_QP, L_QB, L_OP, L_ML, L_CNT, L_P = 0, 2048, 4096, 8192, 8328, 8448
    L_W = 16384

    a(f"v_mov_b32 v{vCA}, 0")
    a(f"v_mov_b32 v{vC1}, 1")
    a(f"v_lshrrev_b32 v{vG}, 4, v0")
    a(f"v_and_b32 v{vCc}, 15, v0")
    a(f"v_lshlrev_b32 v{vKO}, 8, v{vCc}")
    a(f"v_lshl_add_u32 v{vKO}, v{vG}, 4, v{vKO}")
    a(f"v_lshlrev_b32 v{vVO}, 4, v{vCc}")
    a(f"v_lshl_add_u32 v{vVO}, v{vG}, 10, v{vVO}")
    a(f"v_and_b32 v{vT}, 1, v{vG}")
    a(f"v_lshrrev_b32 v{vT+1}, 1, v{vG}")
    a(f"v_lshlrev_b32 v{vLD}, 5, v{vCc}")
    a(f"v_lshl_add_u32 v{vLD}, v{vT}, 3, v{vLD}")
    a(f"v_lshl_add_u32 v{vLD}, v{vT+1}, 4, v{vLD}")
    a("s_lshl_b32 s61, s3, 9")
    a(f"v_add_u32 v{vLD}, s61, v{vLD}")
    a("s_lshl_b32 s60, s63, 5")
    a("s_add_u32 s60, s60, s62")
    a("s_lshl_b32 s60, s60, 21")
    a("s_lshl_b32 s61, s64, 19")
    a("s_add_u32 s60, s60, s61")
    a("s_lshl_b32 s71, s3, 14")
    a(f"s_add_u32 s71, s71, {L_W}")
    sFF, sB0 = 88, 89
    a("s_lshr_b32 s61, s2, 3")
    a("s_cmp_lt_u32 s61, 28")
    a(f"s_cselect_b32 s{sFF}, 1, 0")
    a(f"s_sub_u32 s{sB0}, {4*NT}, s{sFF}")
    sOFF = 72
    sWP, sTMP = 86, 87
    a(f"s_mov_b32 s{sWP}, 0")
    a("s_mov_b32 s84, 0")
    a("s_mov_b32 s82, 0")
    a("s_waitcnt lgkmcnt(0)")
    def srd(d, p, size):
        a(f"s_mov_b32 s{d}, s{p}")
        a(f"s_mov_b32 s{d+1}, s{p+1}")
        a(f"s_mov_b32 s{d+2}, 0x{size:x}")
        a(f"s_mov_b32 s{d+3}, 0x00020000")
    SX, SWQ, SK, SV, SWO, SWS, SW1, SW2 = 28, 32, 36, 40, 44, 48, 52, 56
    srd(SX, 4, 2048)
    srd(SWQ, 10, 512 * 4096 * 2)
    srd(SK, 6, 128 << 20)
    srd(SV, 8, 128 << 20)
    srd(SWO, 12, 4096 * 512 * 2)
    srd(SWS, 26, WS_BYTES)
    srd(SW1, 16, 512 * 1792 * 2)
    srd(SW2, 18, 1792 * 512 * 2)

    def issue_K(seq, buf, pat="c"):
        for j in range(4):
            r = KB(buf) + 4 * j
            if pat == "c":
                a.vm(f"buffer_load_dwordx4 v[{r}:{r+3}], v{vVO}, s[{SK}:{SK+3}], s{sOFF + seq % U} offen offset:{j*256} {pol_kv}", f"K{seq}")
            else:
                a.vm(f"buffer_load_dwordx4 v[{r}:{r+3}], v{vKO}, s[{SK}:{SK+3}], s{sOFF + seq % U} offen offset:{j*64} {pol_kv}", f"K{seq}")
    def issue_V(seq, buf):
        for r_ in range(4):
            r = VB(buf) + 4 * r_
            a.vm(f"buffer_load_dwordx4 v[{r}:{r+3}], v{vVO}, s[{SV}:{SV+3}], s{sOFF + seq % U} offen offset:{r_*256} {pol_kv}", f"V{seq}")

    vGR = vT + 15
    def grab_issue():
        a("s_mov_b64 exec, 1")
        a(f"ds_add_rtn_u32 v{vGR}, v{vCA}, v{vC1} offset:{L_CNT}")
        a("s_mov_b64 exec, -1")
    L_LOG = 12544
    vLG = NV1 - 1
    def grab_resolve(seq):
        a("s_waitcnt lgkmcnt(0)")
        a(f"v_readfirstlane_b32 s61, v{vGR}")
        if stamp:
            a(f"v_mov_b32 v{vT+12}, s61")
            a(f"v_mov_b32 v{vT+13}, s100")
            a(f"ds_write_b64 v{vLG}, v[{vT+12}:{vT+13}] offset:{L_LOG}")
            a(f"v_add_u32 v{vLG}, 8, v{vLG}")
            a("s_memrealtime s[100:101]")
        a(f"s_lshl_b32 s{sTMP}, s61, 12")
        a(f"s_add_u32 s{sTMP}, s{sTMP}, s60")
        a("s_cmp_lt_u32 s61, 128")
        a(f"s_cselect_b32 s{sOFF + seq % U}, s{sTMP}, 0x{OOB:x}")

    def reduce_scatter8(regs):
        a("s_nop 2")
        for i in range(4):
            a(f"v_permlane32_swap_b32 v{regs[i]}, v{regs[i+4]}")
        for i in range(4):
            a(f"v_add_f32 v{regs[i]}, v{regs[i]}, v{regs[i+4]}")
        a("s_nop 1")
        for i in range(2):
            a(f"v_permlane16_swap_b32 v{regs[i]}, v{regs[i+2]}")
        for i in range(2):
            a(f"v_add_f32 v{regs[i]}, v{regs[i]}, v{regs[i+2]}")

    def qfrag():
        a(f"v_lshlrev_b32 v{vT}, 3, v0")
        for w in range(4):
            a(f"ds_read_b64 v[{vQ+2*w}:{vQ+2*w+1}], v{vT} offset:{L_QP + w*512}")
        a("s_lshl_b32 s61, s3, 8")
        a(f"v_lshlrev_b32 v{vT+1}, 2, v0")
        a(f"v_add_u32 v{vT+1}, s61, v{vT+1}")
        a(f"v_lshlrev_b32 v{vT+2}, 4, v{vCc}")
        a(f"v_add_u32 v{vT+2}, s61, v{vT+2}")
        a(f"v_lshlrev_b32 v{vT+4}, 4, v{vG}")
        a(f"v_add_u32 v{vT+4}, s61, v{vT+4}")
        a("s_waitcnt lgkmcnt(0)")
        for (x, y) in ((0, 1), (2, 3), (0, 2)):
            a(f"v_add_f32 v{vQ+2*x}, v{vQ+2*x}, v{vQ+2*y}")
            a(f"v_add_f32 v{vQ+2*x+1}, v{vQ+2*x+1}, v{vQ+2*y+1}")
        a(f"v_cvt_pk_bf16_f32 v{vT+3}, v{vQ}, v{vQ+1}")
        a(f"ds_write_b32 v{vT+1}, v{vT+3} offset:{L_QB}")
        a("s_waitcnt lgkmcnt(0)")
        a(f"ds_read_b128 v[{vQc}:{vQc+3}], v{vT+2} offset:{L_QB}")
        for j in range(4):
            a(f"ds_read_b128 v[{vQ+4*j}:{vQ+4*j+3}], v{vT+4} offset:{L_QB + j*64}")
        a(f"v_mov_b32 v{vM}, 0x{f2u(-3.0e38):08x}")
        a(f"v_mov_b32 v{vL}, 0")
        for i in range(8):
            a(f"v_mov_b32 v{vO+i}, 0")
        a("s_waitcnt lgkmcnt(0)")

    def qk(kreg, S, pat="c"):
        if pat == "m":
            for j in range(4):
                c = "0" if j == 0 else f"v[{S}:{S+3}]"
                a(f"v_mfma_f32_16x16x32_bf16 v[{S}:{S+3}], v[{kreg+4*j}:{kreg+4*j+3}], v[{vQ+4*j}:{vQ+4*j+3}], {c}")
            a("s_nop 7")
            return
        for d in range(4):
            for r in range(4):
                c = "0" if d == 0 else f"v{S+r}"
                a(f"v_dot2_f32_bf16 v{S+r}, v{kreg+4*r+d}, v{vQc+d}, {c}")
        a("s_nop 0")
        for rr in (8, 4, 2, 1):
            for r in range(4):
                a(f"v_add_f32_dpp v{S+r}, v{S+r}, v{S+r} row_ror:{rr} row_mask:0xf bank_mask:0xf")

    mN, al, mc, ps, t1, t2, P01, P23 = vT, vT + 1, vT + 2, vT + 4, vT + 8, vT + 9, vT + 10, vT + 11
    pt = [vT + 12, vT + 13, vT + 14, vT + 3]
    def softmax_pv(S, vreg):
        if mimic:
            for h2 in range(2):
                a(f"v_cvt_pk_bf16_f32 v{t1}, v{S+2*h2}, v{S+2*h2+1}")
                a(f"v_lshlrev_b32 v{S+2*h2}, 16, v{t1}")
                a(f"v_and_b32 v{S+2*h2+1}, 0xffff0000, v{t1}")
                a(f"v_mul_f32 v{S+2*h2}, s68, v{S+2*h2}")
                a(f"v_mul_f32 v{S+2*h2+1}, s68, v{S+2*h2+1}")
                a(f"v_cvt_pk_bf16_f32 v{t1}, v{S+2*h2}, v{S+2*h2+1}")
                a(f"v_lshlrev_b32 v{S+2*h2}, 16, v{t1}")
                a(f"v_and_b32 v{S+2*h2+1}, 0xffff0000, v{t1}")
        a(f"v_max3_f32 v{mN}, v{S}, v{S+1}, v{vM}")
        a(f"v_max3_f32 v{mN}, v{S+2}, v{S+3}, v{mN}")
        a(f"v_sub_f32 v{al}, v{vM}, v{mN}")
        a(f"v_mul_f32 v{mc}, s{sC}, v{mN}")
        a(f"v_mul_f32 v{al}, s{sC}, v{al}")
        for i in range(4):
            a(f"v_fma_f32 v{ps+i}, v{S+i}, s{sC}, -v{mc}")
        a(f"v_exp_f32 v{al}, v{al}")
        for i in range(4):
            a(f"v_exp_f32 v{ps+i}, v{ps+i}")
        a(f"v_mov_b32 v{vM}, v{mN}")
        for i in range(8):
            a(f"v_mul_f32 v{vO+i}, v{al}, v{vO+i}")
        a(f"v_cvt_pk_bf16_f32 v{P01}, v{ps}, v{ps+1}")
        a(f"v_cvt_pk_bf16_f32 v{P23}, v{ps+2}, v{ps+3}")
        a(f"v_add_f32 v{t1}, v{ps}, v{ps+1}")
        a(f"v_add_f32 v{t2}, v{ps+2}, v{ps+3}")
        a(f"v_add_f32 v{t1}, v{t1}, v{t2}")
        a(f"v_fma_f32 v{vL}, v{vL}, v{al}, v{t1}")
        for pr, P in ((0, P01), (2, P23)):
            r0, r1 = vreg + 4 * pr, vreg + 4 * (pr + 1)
            for d in range(4):
                tl, th = pt[2 * (d & 1)], pt[2 * (d & 1) + 1]
                a(f"v_perm_b32 v{tl}, v{r1+d}, v{r0+d}, s{sSELLO}")
                a(f"v_perm_b32 v{th}, v{r1+d}, v{r0+d}, s{sSELHI}")
                a(f"v_dot2_f32_bf16 v{vO+2*d}, v{tl}, v{P}, v{vO+2*d}")
                a(f"v_dot2_f32_bf16 v{vO+2*d+1}, v{th}, v{P}, v{vO+2*d+1}")

    vWA = vW + 67
    def wo_setup():
        a(f"v_lshrrev_b32 v{vWA}, 3, v0")
        a(f"v_lshlrev_b32 v{vWA}, 10, v{vWA}")
        a(f"v_and_b32 v{vT+12}, 7, v0")
        a(f"v_lshl_add_u32 v{vWA}, v{vT+12}, 4, v{vWA}")
        a("s_lshl_b32 s83, s62, 17")
        a("s_lshl_b32 s61, s3, 7")
        a("s_add_u32 s83, s83, s61")
    def wo_piece(n, track):
        sl, i = n >> 4, n & 15
        a(f"s_add_u32 m0, s71, {sl*65536 + i*1024}")
        a(f"s_add_u32 s61, s83, {sl*512 + i*8192}")
        ins = f"buffer_load_dwordx4 v{vWA}, s[{SWO}:{SWO+3}], s61 offen lds {pol_w}"
        if track: a.vm(ins, "wo")
        else: a(ins)
    def wo_flag_set():
        a("s_lshl_b32 s61, s3, 2")
        a(f"v_mov_b32 v{vT+12}, s61")
        a(f"ds_write_b32 v{vT+12}, v{vC1} offset:{L_CNT+8}")
    def wo_flag_wait():
        n = npoll[0]; npoll[0] += 1
        a("s_sub_u32 s61, s3, 4")
        a("s_lshl_b32 s61, s61, 2")
        a(f"v_mov_b32 v{vT+1}, s61")
        a.label(f"L1_poll{n}")
        a(f"ds_read_b32 v{vT}, v{vT+1} offset:{L_CNT+8}")
        a("s_waitcnt lgkmcnt(0)")
        a(f"v_readfirstlane_b32 s61, v{vT}")
        a("s_cmp_eq_u32 s61, 1")
        a(f"s_cbranch_scc1 L1_polled{n}")
        a("s_sleep 8")
        a(f"s_branch L1_poll{n}")
        a.label(f"L1_polled{n}")
    npoll = [0]

    Wlo = [None] * 32; Whi = [None] * 32
    def wperm():
        a(f"v_and_b32 v{vT+12}, 31, v0")
        a(f"v_lshrrev_b32 v{vT+13}, 5, v0")
        a(f"v_lshlrev_b32 v{vT+13}, 13, v{vT+13}")
        a(f"v_lshl_add_u32 v{vT+13}, v{vT+12}, 2, v{vT+13}")
        a(f"v_add_u32 v{vT+13}, s71, v{vT+13}")
        free = vW + 64
        for r in range(64):
            a(f"ds_read_b32 v{vW+r}, v{vT+13} offset:{r*128}")
        a("s_waitcnt lgkmcnt(0)")
        for p in range(32):
            r0, r1 = vW + 2 * p, vW + 2 * p + 1
            a(f"v_perm_b32 v{free}, v{r1}, v{r0}, s{sSELLO}")
            a(f"v_perm_b32 v{r1}, v{r1}, v{r0}, s{sSELHI}")
            Wlo[p] = free; Whi[p] = r1
            free = r0
        a(f"s_mov_b32 s{sWP}, 1")

    def young_tiles_issue(n):
        for i in range(n):
            if ypace and i >= ypace:
                a.wait_vm(f"V{i-ypace}")
            issue_K(i, i)
            issue_V(i, i)
    def young_tiles_process(n):
        for i in range(n):
            a.wait_vm(f"K{i}")
            qk(KB(i), vS[0])
            a.wait_vm(f"V{i}")
            softmax_pv(vS[0], VB(i))

    a(f"s_add_u32 s61, s{sB0}, {4*D}")
    a(f"v_mov_b32 v{vT+6}, s61")
    for i in range(7, 12):
        a(f"v_mov_b32 v{vT+i}, 0")
    a(f"ds_write_b64 v{vCA}, v[{vT+6}:{vT+7}] offset:{L_CNT}")
    a(f"ds_write_b128 v{vCA}, v[{vT+8}:{vT+11}] offset:{L_CNT+8}")
    a("s_waitcnt lgkmcnt(0)")
    a("s_barrier")
    def q_wait():
        n = npoll[0]; npoll[0] += 1
        a.label(f"L1_poll{n}")
        a(f"ds_read_b32 v{vT}, v{vCA} offset:{L_CNT+4}")
        a("s_waitcnt lgkmcnt(0)")
        a(f"v_readfirstlane_b32 s61, v{vT}")
        a("s_cmp_ge_u32 s61, 4")
        a(f"s_cbranch_scc1 L1_polled{n}")
        a("s_sleep 1")
        a(f"s_branch L1_poll{n}")
        a.label(f"L1_polled{n}")
    a("s_cmp_lt_u32 s3, 4")
    a("s_cbranch_scc1 L1_pathA")
    a("s_setprio 2")
    a("s_add_u32 s61, s3, 3")
    a("s_and_b32 s61, s61, 3")
    a(f"s_mul_i32 s61, s61, {NT*4096}")
    a(f"s_add_u32 s{sOFF}, s60, s61")
    for k in range(1, NT):
        a(f"s_add_u32 s{sOFF+k}, s{sOFF}, {k*4096}")
    a("s_cmp_eq_u32 s3, 4")
    a("s_cbranch_scc0 L1_pathB")
    a(f"s_cmp_eq_u32 s{sFF}, 1")
    a("s_cbranch_scc0 L1_pathB")

    a.q = []
    fB = vR + (NT - 1) * 32
    fW1, fW2, fX, fA, fT = fB, fB + 32, fB + 64, fB + 72, fB + 88
    assert fT + 4 <= vCA
    a("s_lshr_b32 s61, s2, 3")
    a("s_and_b32 s69, s2, 7")
    a("s_mul_i32 s69, s69, 28")
    a("s_add_u32 s85, s69, s61")
    a("s_mov_b32 s61, 28672")
    a(f"v_mul_lo_u32 v{vT}, v0, s61")
    a(f"v_lshlrev_b32 v{vT+1}, 4, v0")
    for b in range(2):
        a.vm(f"buffer_load_dwordx4 v[{fX+4*b}:{fX+4*b+3}], v{vT+1}, s[{SX}:{SX+3}], 0 offen offset:{b*1024}", "f")
    a("s_lshl_b32 s70, s85, 4")
    for i in range(8):
        if i & 1 == 0:
            a(f"s_add_u32 s61, s70, {i*3584}")
        a.vm(f"buffer_load_dwordx4 v[{fW1+4*i}:{fW1+4*i+3}], v{vT}, s[{SW1}:{SW1+3}], s61 offen offset:{(i&1)*3584} {pol_w}", "f")
    a("s_lshl_b32 s70, s85, 13")
    for j in range(8):
        if j & 3 == 0:
            a(f"s_add_u32 s61, s70, {j*1024}")
        a.vm(f"buffer_load_dwordx4 v[{fW2+4*j}:{fW2+4*j+3}], v{vT+1}, s[{SW2}:{SW2+3}], s61 offen offset:{(j&3)*1024} {pol_w}", "f")
    young_tiles_issue(NT - 1)
    q_wait()
    qfrag()
    STAMP(1)
    young_tiles_process(NT - 1)
    for i in range(16):
        a(f"v_mov_b32 v{fA+i}, 0")
    def f_compute(W, xs):
        for p in range(4):
            r0, r1 = W + 8 * p, W + 8 * p + 4
            for d in range(4):
                tl, th = fT + 2 * (d & 1), fT + 1 + 2 * (d & 1)
                a(f"v_perm_b32 v{tl}, v{r1+d}, v{r0+d}, s{sSELLO}")
                a(f"v_perm_b32 v{th}, v{r1+d}, v{r0+d}, s{sSELHI}")
                for b in range(2):
                    a(f"v_dot2_f32_bf16 v{fA+b*8+2*d}, v{tl}, {xs(b,p)}, v{fA+b*8+2*d}")
                    a(f"v_dot2_f32_bf16 v{fA+b*8+2*d+1}, v{th}, {xs(b,p)}, v{fA+b*8+2*d+1}")
    f_compute(fW1, lambda b, p: f"v{fX+4*b+p}")
    a("s_nop 2")
    for i in range(8):
        a(f"v_permlane32_swap_b32 v{fA+i}, v{fA+i+8}")
    for i in range(8):
        a(f"v_add_f32 v{fA+i}, v{fA+i}, v{fA+i+8}")
    a("s_nop 1")
    for i in range(4):
        a(f"v_permlane16_swap_b32 v{fA+i}, v{fA+i+4}")
    for i in range(4):
        a(f"v_add_f32 v{fA+i}, v{fA+i}, v{fA+i+4}")
    for rr in (8, 4, 2, 1):
        a("s_nop 1")
        for i in range(4):
            a(f"v_add_f32_dpp v{fA+i}, v{fA+i}, v{fA+i} row_ror:{rr} row_mask:0xf bank_mask:0xf")
    for i in range(4):
        a(f"v_cvt_pk_bf16_f32 v{fA+i}, v{fA+i}, v{fA+i}")
    for i in range(4):
        a(f"v_lshlrev_b32 v{fA+i}, 16, v{fA+i}")
    for i in range(4):
        a(f"v_mul_f32 v{fA+4+i}, 0x{f2u(-LOG2E):08x}, v{fA+i}")
    for i in range(4):
        a(f"v_exp_f32 v{fA+4+i}, v{fA+4+i}")
    a("s_nop 0")
    for i in range(4):
        a(f"v_add_f32 v{fA+4+i}, 1.0, v{fA+4+i}")
    for i in range(4):
        a(f"v_rcp_f32 v{fA+4+i}, v{fA+4+i}")
    a("s_nop 0")
    for i in range(4):
        a(f"v_mul_f32 v{fA+i}, v{fA+i}, v{fA+4+i}")
    a(f"v_cvt_pk_bf16_f32 v{fA+8}, v{fA}, v{fA+1}")
    a(f"v_cvt_pk_bf16_f32 v{fA+9}, v{fA+2}, v{fA+3}")
    a("s_nop 0")
    sH = 72
    for g in range(4):
        for k in range(2):
            a(f"v_readlane_b32 s{sH + (g>>1)*4 + (g&1)*2 + k}, v{fA+8+k}, {16*g}")
    for i in range(16):
        a(f"v_mov_b32 v{fA+i}, 0")
    f_compute(fW2, lambda b, p: f"s{sH+4*b+p}")
    fK = vR + 64
    a("s_nop 2")
    for i in range(16):
        a(f"v_mov_b32 v{fK+i}, v{fA+i}")
    a(f"v_lshrrev_b32 v{fK+16}, 1, v0")
    a(f"v_lshlrev_b32 v{fK+16}, 14, v{fK+16}")
    a(f"v_and_b32 v{fK+17}, 1, v0")
    a(f"v_lshl_add_u32 v{fK+16}, v{fK+17}, 5, v{fK+16}")
    a("s_mov_b32 s84, 1")
    a("s_branch L1_yexit")

    a.q = []
    a.label("L1_pathB")
    young_tiles_issue(NT)
    q_wait()
    qfrag()
    STAMP(1)
    young_tiles_process(NT)
    a.label("L1_yexit")
    STAMP(2)
    wo_flag_wait()
    wperm()
    a("s_branch L1_comb")

    a.q = []
    a.label("L1_pathA")
    a("s_setprio 3")
    vX = vW
    a(f"v_lshlrev_b32 v{vT}, 6, v{vG}")
    a("s_lshl_b32 s61, s63, 10")
    a("s_lshl_b32 s69, s3, 8")
    a("s_add_u32 s61, s61, s69")
    for k in range(4):
        a.vm(f"buffer_load_dwordx4 v[{vX+4*k}:{vX+4*k+3}], v{vT}, s[{SX}:{SX+3}], s61 offen offset:{16*k}", "x")
    a(f"v_lshlrev_b32 v{vT+1}, 4, v{vCc}")
    a(f"v_lshl_add_u32 v{vT+1}, v{vG}, 18, v{vT+1}")
    a("s_lshl_b32 s61, s3, 20")
    a("s_lshl_b32 s69, s62, 8")
    a("s_add_u32 s61, s61, s69")
    for i in range(32):
        if i > 0:
            a("s_add_u32 s61, s61, 8192")
        r = vR + 4 * i
        a.vm(f"buffer_load_dwordx4 v[{r}:{r+3}], v{vT+1}, s[{SWQ}:{SWQ+3}], s61 offen {pol_w}", f"wq{i}")
    acc = [vS[0] + i for i in range(4)] + [vS[1] + i for i in range(4)]
    for i in range(8):
        a(f"v_mov_b32 v{acc[i]}, 0")
    a(f"s_add_u32 s61, s{sB0}, s3")
    a("s_lshl_b32 s61, s61, 12")
    a(f"s_add_u32 s{sOFF}, s60, s61")
    for k in range(1, D):
        a(f"s_add_u32 s{sOFF+k}, s{sOFF}, {k*4*4096}")
    for p in range(16):
        a.wait_vm("x", f"wq{2*p+1}")
        r0 = vR + 8 * p; r1 = r0 + 4
        for d in range(4):
            tl, th = vT + 2 + 2 * (d & 1), vT + 3 + 2 * (d & 1)
            a(f"v_perm_b32 v{tl}, v{r1+d}, v{r0+d}, s{sSELLO}")
            a(f"v_perm_b32 v{th}, v{r1+d}, v{r0+d}, s{sSELHI}")
            a(f"v_dot2_f32_bf16 v{acc[2*d]}, v{tl}, v{vX+p}, v{acc[2*d]}")
            a(f"v_dot2_f32_bf16 v{acc[2*d+1]}, v{th}, v{vX+p}, v{acc[2*d+1]}")
    reduce_scatter8(acc)
    a(f"ds_write_b64 v{vLD}, v[{acc[0]}:{acc[1]}] offset:{L_QP}")
    a("s_waitcnt lgkmcnt(0)")
    a("s_mov_b64 exec, 1")
    a(f"ds_add_u32 v{vCA}, v{vC1} offset:{L_CNT+4}")
    a("s_mov_b64 exec, -1")
    a.q = []
    q_wait()
    qfrag()
    a("s_setprio 0")
    STAMP(1)
    if stamp:
        a("s_lshl_b32 s61, s3, 9")
        a(f"v_mov_b32 v{vLG}, s61")
        a("s_memrealtime s[100:101]")
    grab_issue()
    for t in range(D):
        issue_K(t, t)
        issue_V(t, t)
    wo_setup()
    npeel = -(-32 // (U * wo_per_step))
    def patof(seq):
        if seq < npeel * U: return kpeel[seq % len(kpeel)]
        return kpat[(seq % U) % len(kpat)]
    assert U % len(kpat) == 0
    piece = 0
    for ps_ in range(npeel):
        for k in range(U):
            seq = ps_ * U + k
            grab_resolve(k + D)
            grab_issue()
            issue_K(seq + D, (k + D) % NB, patof(seq + D))
            issue_V(seq + D, (k + D) % NB)
            for _ in range(wo_per_step):
                if piece < 32:
                    wo_piece(piece, True); piece += 1
            buf = k % NB
            a.wait_vm(f"K{seq}")
            qk(KB(buf), vS[0], patof(seq) if seq >= D else "c")
            a.wait_vm(f"V{seq}")
            softmax_pv(vS[0], VB(buf))
            a(f"s_cmp_eq_u32 s{sOFF + (k+1) % U}, 0x{OOB:x}")
            a("s_cbranch_scc1 L1_exit")
    a("s_mov_b32 s82, 1")
    a.label("L1_body")
    for k in range(U):
        grab_resolve(k + D)
        grab_issue()
        issue_K(k + D, (k + D) % NB, patof(npeel * U + k + D))
        issue_V(k + D, (k + D) % NB)
        buf = k % NB
        a(f"s_waitcnt vmcnt({8*D+4})")
        qk(KB(buf), vS[0], patof(npeel * U + k))
        a(f"s_waitcnt vmcnt({8*D})")
        softmax_pv(vS[0], VB(buf))
        a(f"s_cmp_eq_u32 s{sOFF + (k+1) % U}, 0x{OOB:x}")
        a("s_cbranch_scc1 L1_exit")
    a(f"s_cmp_eq_u32 s{sWP}, 1")
    a("s_cbranch_scc1 L1_body")
    a("s_waitcnt lgkmcnt(0)")
    wo_flag_set()
    wperm()
    a("s_branch L1_body")
    a.label("L1_exit")
    STAMP(2)
    a(f"s_cmp_eq_u32 s{sWP}, 1")
    a("s_cbranch_scc1 L1_comb")
    a("s_cmp_eq_u32 s82, 1")
    a("s_cbranch_scc1 L1_wo_issued")
    for n in range(32):
        wo_piece(n, False)
    a.label("L1_wo_issued")
    a("s_waitcnt vmcnt(0) lgkmcnt(0)")
    wo_flag_set()
    wperm()
    a.label("L1_comb")

    x1, x2, MW, f = vT, vT + 1, vT + 2, vT + 3
    a(f"v_mov_b32 v{x1}, v{vM}")
    a(f"v_mov_b32 v{x2}, v{vM}")
    a("s_nop 1")
    a(f"v_permlane32_swap_b32 v{x1}, v{x2}")
    a(f"v_max_f32 v{x1}, v{x1}, v{x2}")
    a(f"v_mov_b32 v{x2}, v{x1}")
    a("s_nop 1")
    a(f"v_permlane16_swap_b32 v{x1}, v{x2}")
    a(f"v_max_f32 v{MW}, v{x1}, v{x2}")
    a(f"v_sub_f32 v{f}, v{vM}, v{MW}")
    a(f"v_mul_f32 v{f}, s{sC}, v{f}")
    a(f"v_exp_f32 v{f}, v{f}")
    a("s_nop 0")
    a(f"v_mul_f32 v{x1}, v{f}, v{vL}")
    a(f"v_mul_f32 v{x2}, v{f}, v{vL}")
    for i in range(8):
        a(f"v_mul_f32 v{vO+i}, v{f}, v{vO+i}")
    a(f"v_permlane32_swap_b32 v{x1}, v{x2}")
    a(f"v_add_f32 v{x1}, v{x1}, v{x2}")
    a(f"v_mov_b32 v{x2}, v{x1}")
    a("s_nop 1")
    a(f"v_permlane16_swap_b32 v{x1}, v{x2}")
    a(f"v_add_f32 v{MW+1}, v{x1}, v{x2}")
    reduce_scatter8([vO + i for i in range(8)])
    a(f"ds_write_b64 v{vLD}, v[{vO}:{vO+1}] offset:{L_OP}")
    a("s_lshl_b32 s61, s3, 3")
    a(f"v_mov_b32 v{x1}, s61")
    a(f"ds_write_b64 v{x1}, v[{MW}:{MW+1}] offset:{L_ML}")
    aOP, aPW, aPR, aY = vM, vL, vS[0], vKO
    a(f"v_lshlrev_b32 v{aOP}, 3, v0")
    a("s_lshl_b32 s61, s3, 9")
    a(f"s_add_u32 s61, s61, {L_P}")
    a(f"v_lshlrev_b32 v{aPW}, 2, v0")
    a(f"v_add_u32 v{aPW}, s61, v{aPW}")
    a(f"v_lshrrev_b32 v{aPR}, 5, v0")
    a(f"v_lshlrev_b32 v{aPR}, 7, v{aPR}")
    a(f"v_add_u32 v{aPR}, s61, v{aPR}")
    a(f"v_and_b32 v{x2}, 31, v0")
    a(f"v_lshrrev_b32 v{vT+4}, 3, v{x2}")
    a(f"v_lshlrev_b32 v{aY}, 13, v{vT+4}")
    a(f"v_and_b32 v{x2}, 7, v{x2}")
    a(f"v_lshl_add_u32 v{aY}, v{x2}, 3, v{aY}")
    a(f"v_lshrrev_b32 v{x2}, 5, v0")
    a(f"v_lshl_add_u32 v{aY}, v{x2}, 2, v{aY}")
    a("s_lshl_b32 s61, s63, 5")
    a("s_lshl_b32 s69, s3, 2")
    a("s_add_u32 s61, s61, s69")
    a("s_lshl_b32 s61, s61, 13")
    a("s_lshl_b32 s69, s62, 2")
    a("s_add_u32 s69, s69, s64")
    a("s_lshl_b32 s70, s69, 6")
    a("s_add_u32 s60, s61, s70")
    a("s_waitcnt vmcnt(0) lgkmcnt(0)")
    a("s_barrier")
    STAMP(4)
    a(f"v_mov_b32 v{x1}, 0")
    for i in range(4):
        a(f"ds_read_b128 v[{vQ+4*i}:{vQ+4*i+3}], v{x1} offset:{L_ML + 16*i}")
    op = [vR + 2 * w for w in range(8)]
    for w in range(8):
        a(f"ds_read_b64 v[{op[w]}:{op[w]+1}], v{aOP} offset:{L_OP + w*512}")
    a("s_waitcnt lgkmcnt(8)")
    Mt, Lt = vT + 4, vT + 5
    a(f"v_max3_f32 v{Mt}, v{vQ}, v{vQ+2}, v{vQ+4}")
    a(f"v_max3_f32 v{Mt}, v{vQ+6}, v{vQ+8}, v{Mt}")
    a(f"v_max3_f32 v{Mt}, v{vQ+10}, v{vQ+12}, v{Mt}")
    a(f"v_max_f32 v{Mt}, v{vQ+14}, v{Mt}")
    for w in range(8):
        a(f"v_sub_f32 v{vQ+2*w}, v{vQ+2*w}, v{Mt}")
    for w in range(8):
        a(f"v_mul_f32 v{vQ+2*w}, s{sC}, v{vQ+2*w}")
    for w in range(8):
        a(f"v_exp_f32 v{vQ+2*w}, v{vQ+2*w}")
    a("s_waitcnt lgkmcnt(0)")
    o0, o1, hi, lo = vT + 6, vT + 7, vT + 8, vT + 9
    a(f"v_mul_f32 v{o0}, v{vQ}, v{op[0]}")
    a(f"v_mul_f32 v{o1}, v{vQ}, v{op[0]+1}")
    for w in range(1, 8):
        a(f"v_fma_f32 v{o0}, v{vQ+2*w}, v{op[w]}, v{o0}")
        a(f"v_fma_f32 v{o1}, v{vQ+2*w}, v{op[w]+1}, v{o1}")
    a(f"v_cvt_pk_bf16_f32 v{hi}, v{o0}, v{o1}")
    a(f"v_lshlrev_b32 v{x1}, 16, v{hi}")
    a(f"v_and_b32 v{x2}, 0xffff0000, v{hi}")
    a(f"v_sub_f32 v{o0}, v{o0}, v{x1}")
    a(f"v_sub_f32 v{o1}, v{o1}, v{x2}")
    a(f"v_cvt_pk_bf16_f32 v{lo}, v{o0}, v{o1}")
    a(f"ds_write_b32 v{aPW}, v{hi}")
    a(f"ds_write_b32 v{aPW}, v{lo} offset:256")
    a(f"v_mul_f32 v{Lt}, v{vQ}, v{vQ+1}")
    for w in range(1, 8):
        a(f"v_fma_f32 v{Lt}, v{vQ+2*w}, v{vQ+2*w+1}, v{Lt}")
    a("s_waitcnt lgkmcnt(0)")
    OH, OL = vR, vR + 32
    for k in range(8):
        a(f"ds_read_b128 v[{OH+4*k}:{OH+4*k+3}], v{aPR} offset:{16*k}")
    for k in range(8):
        a(f"ds_read_b128 v[{OL+4*k}:{OL+4*k+3}], v{aPR} offset:{256+16*k}")
    ac = [vO + i for i in range(8)]
    for k in range(8):
        a(f"s_waitcnt lgkmcnt({15 - k})")
        for p in range(4 * k, 4 * k + 4):
            j = 2 * (p & 1)
            c0 = "0" if p < 2 else f"v{ac[j]}"
            c1 = "0" if p < 2 else f"v{ac[j+1]}"
            a(f"v_dot2_f32_bf16 v{ac[j]}, v{Wlo[p]}, v{OH+p}, {c0}")
            a(f"v_dot2_f32_bf16 v{ac[j+1]}, v{Whi[p]}, v{OH+p}, {c1}")
    for k in range(8):
        a(f"s_waitcnt lgkmcnt({7 - k})")
        for p in range(4 * k, 4 * k + 4):
            j = 4 + 2 * (p & 1)
            c0 = "0" if p < 2 else f"v{ac[j]}"
            c1 = "0" if p < 2 else f"v{ac[j+1]}"
            a(f"v_dot2_f32_bf16 v{ac[j]}, v{Wlo[p]}, v{OL+p}, {c0}")
            a(f"v_dot2_f32_bf16 v{ac[j+1]}, v{Whi[p]}, v{OL+p}, {c1}")
    a("s_nop 2")
    a(f"v_add_f32 v{ac[0]}, v{ac[0]}, v{ac[2]}")
    a(f"v_add_f32 v{ac[1]}, v{ac[1]}, v{ac[3]}")
    a(f"v_add_f32 v{ac[4]}, v{ac[4]}, v{ac[6]}")
    a(f"v_add_f32 v{ac[5]}, v{ac[5]}, v{ac[7]}")
    a(f"v_add_f32 v{ac[0]}, v{ac[0]}, v{ac[4]}")
    a(f"v_add_f32 v{ac[1]}, v{ac[1]}, v{ac[5]}")
    a("s_nop 1")
    a(f"v_permlane32_swap_b32 v{ac[0]}, v{ac[1]}")
    a(f"v_add_f32 v{ac[0]}, v{ac[0]}, v{ac[1]}")
    a(f"buffer_store_dword v{ac[0]}, v{aY}, s[{SWS}:{SWS+3}], s60 offen")
    STAMP(3)
    STAMP_STORE(6, ["s_lshl_b32 s61, s2, 4", "s_add_u32 s61, s61, s3", "s_lshl_b32 s61, s61, 5"], SWS, vQ)
    if dbg:
        a("s_waitcnt lgkmcnt(0)")
        a("s_mov_b32 s28, s24"); a("s_mov_b32 s29, s25"); a("s_mov_b32 s30, 256"); a("s_mov_b32 s31, 0x00020000")
        a("s_not_b32 s61, s90")
        a(f"v_mov_b32 v{vQ}, s61")
        a(f"v_mov_b32 v{vQ+1}, s92")
        a(f"v_mov_b32 v{vQ+2}, s94")
        a(f"v_mov_b32 v{vQ+3}, s96")
        a(f"v_mov_b32 v{vQ+4}, 0")
        a("s_mov_b64 exec, 1")
        for k in range(4):
            a(f"buffer_atomic_umax v{vQ+k}, v{vQ+4}, s[28:31], 0 offen offset:{4*k} sc1")
        a("s_mov_b64 exec, -1")
    if stamp:
        a("s_cmp_ge_u32 s3, 4")
        a("s_cbranch_scc1 L1_nolog")
        a("s_lshl_b32 s61, s3, 9")
        a(f"v_lshlrev_b32 v{vQ}, 3, v0")
        a(f"v_add_u32 v{vQ+1}, s61, v{vQ}")
        a(f"ds_read_b64 v[{vQ+2}:{vQ+3}], v{vQ+1} offset:{L_LOG}")
        a("s_lshl_b32 s70, s2, 11")
        a("s_add_u32 s61, s61, s70")
        a(f"s_add_u32 s61, s61, {WS_ST + 262144}")
        a("s_waitcnt lgkmcnt(0)")
        a(f"buffer_store_dwordx2 v[{vQ+2}:{vQ+3}], v{vQ}, s[{SWS}:{SWS+3}], s61 offen")
        a.label("L1_nolog")
    a("s_cmp_eq_u32 s84, 1")
    a("s_cbranch_scc0 L1_noffn")
    a("s_lshl_b32 s61, s85, 6")
    a(f"s_add_u32 s61, s61, {WS_BP}")
    a(f"s_add_u32 s70, s61, {32*256*64}")
    for b in range(2):
        so = "s61" if b == 0 else "s70"
        a(f"buffer_store_dwordx4 v[{fK+b*8}:{fK+b*8+3}], v{fK+16}, s[{SWS}:{SWS+3}], {so} offen")
        a(f"buffer_store_dwordx4 v[{fK+b*8+4}:{fK+b*8+7}], v{fK+16}, s[{SWS}:{SWS+3}], {so} offen offset:16")
    a.label("L1_noffn")
    a("s_cmp_lg_u32 s3, 0")
    a("s_cbranch_scc1 L1_done")
    a("s_lshl_b32 s61, s63, 7")
    a("s_add_u32 s61, s61, s69")
    a("s_lshl_b32 s61, s61, 3")
    a(f"s_add_u32 s61, s61, {WS_ML}")
    a(f"v_mov_b32 v{x1}, 0")
    a("v_cmp_eq_u32 vcc, 0, v0")
    a("s_and_saveexec_b64 s[70:71], vcc")
    assert Mt % 2 == 0 and Lt == Mt + 1
    a(f"buffer_store_dwordx2 v[{Mt}:{Lt}], v{x1}, s[{SWS}:{SWS+3}], s61 offen")
    a.label("L1_done")
    a("s_endpgm")

    a.q = []
    a.raw(".globl fin_kernel")
    a.raw(".p2align 8")
    a.raw(".type fin_kernel,@function")
    a.label("fin_kernel")
    a("s_cmp_ge_u32 s2, 64")
    a("s_cbranch_scc1 L2_done")
    STAMP(0)
    a("s_load_dwordx2 s[4:5], s[0:1], 0")
    a("s_load_dwordx8 s[20:27], s[0:1], 64")
    a("v_lshrrev_b32 v1, 6, v0")
    a("v_and_b32 v2, 15, v0")
    a("v_lshrrev_b32 v3, 4, v0")
    a("v_readfirstlane_b32 s3, v1")
    a("s_lshr_b32 s63, s2, 5")
    a("v_lshlrev_b32 v4, 2, v2")
    a("v_lshl_add_u32 v4, v3, 9, v4")
    a("v_lshlrev_b32 v5, 6, v3")
    a("v_mul_u32_u24 v6, 896, v3")
    a("v_lshl_add_u32 v6, v2, 2, v6")
    a("v_lshlrev_b32 v7, 2, v0")
    a("s_lshl_b32 s60, s2, 13")
    a("s_lshl_b32 s61, s63, 10")
    a(f"s_add_u32 s62, s61, {WS_ML}")
    a("s_lshl_b32 s64, s2, 14")
    a(f"s_add_u32 s64, s64, {WS_BP}")
    a("s_waitcnt lgkmcnt(0)")
    srd(SWS, 26, WS_BYTES)
    srd(SX, 4, 2048)
    srd(32, 20, 1024)
    srd(36, 22, 2048)
    ML = 24
    for i in range(4):
        a.vm(f"buffer_load_dwordx4 v[{ML+4*i}:{ML+4*i+3}], v5, s[{SWS}:{SWS+3}], s62 offen offset:{i*16}", "ml")
    Y = 16
    for i in range(8):
        a.vm(f"buffer_load_dword v{Y+i}, v4, s[{SWS}:{SWS+3}], s60 offen offset:{i*64}", "y")
    BP = 40
    for i in range(14):
        a.vm(f"buffer_load_dword v{BP+i}, v6, s[{SWS}:{SWS+3}], s64 offen offset:{i*64}", "bp")
    a.vm(f"buffer_load_dword v54, v7, s[{SX}:{SX+3}], s61 offen", "g")
    a.vm("buffer_load_dword v55, v7, s[32:35], 0 offen", "g")
    sC2 = 67
    a(f"s_mov_b32 s{sC2}, 0x{f2u(LOG2E if mimic else LOG2E * SCALE):08x}")
    a.wait_vm("ml")
    for hh in range(2):
        B = ML + hh * 8
        Mx, Ls = 8 + hh * 2, 9 + hh * 2
        a(f"v_max3_f32 v{Mx}, v{B}, v{B+2}, v{B+4}")
        a(f"v_max_f32 v{Mx}, v{B+6}, v{Mx}")
        for s_ in range(4):
            a(f"v_sub_f32 v{B+2*s_}, v{B+2*s_}, v{Mx}")
        for s_ in range(4):
            a(f"v_mul_f32 v{B+2*s_}, s{sC2}, v{B+2*s_}")
        for s_ in range(4):
            a(f"v_exp_f32 v{B+2*s_}, v{B+2*s_}")
        a("s_nop 0")
        a(f"v_mul_f32 v{Ls}, v{B}, v{B+1}")
        for s_ in range(1, 4):
            a(f"v_fma_f32 v{Ls}, v{B+2*s_}, v{B+2*s_+1}, v{Ls}")
        a(f"v_rcp_f32 v{Ls}, v{Ls}")
    a.wait_vm("y")
    for hh in range(2):
        B = ML + hh * 8
        Mx = 8 + hh * 2
        a(f"v_mul_f32 v{Mx}, v{B}, v{Y+hh*4}")
        for s_ in range(1, 4):
            a(f"v_fma_f32 v{Mx}, v{B+2*s_}, v{Y+hh*4+s_}, v{Mx}")
    a("v_mul_f32 v12, v8, v9")
    a("v_fma_f32 v12, v10, v11, v12")
    a.wait_vm("bp")
    for i in range(7):
        a(f"v_add_f32 v{BP+2*i}, v{BP+2*i}, v{BP+2*i+1}")
    a(f"v_add_f32 v{BP}, v{BP}, v{BP+2}")
    a(f"v_add_f32 v{BP+4}, v{BP+4}, v{BP+6}")
    a(f"v_add_f32 v{BP+8}, v{BP+8}, v{BP+10}")
    a(f"v_add_f32 v{BP}, v{BP}, v{BP+4}")
    a(f"v_add_f32 v{BP+8}, v{BP+8}, v{BP+12}")
    a(f"v_add_f32 v13, v{BP}, v{BP+8}")
    a.wait_vm("g")
    a("v_lshlrev_b32 v56, 16, v54")
    a("v_and_b32 v57, 0xffff0000, v54")
    a("v_lshlrev_b32 v58, 16, v55")
    a("v_and_b32 v59, 0xffff0000, v55")
    a("v_mul_f32 v56, v56, v58")
    a("v_mul_f32 v57, v57, v59")
    a("v_cvt_pk_bf16_f32 v56, v56, v57")
    a("v_lshlrev_b32 v57, 16, v56")
    a("v_and_b32 v56, 0xffff0000, v56")
    a("v_add_f32 v14, v56, v57")
    a("v_permlane32_swap_b32 v12, v13")
    a("v_add_f32 v12, v12, v13")
    a("v_mov_b32 v13, v12")
    a("v_mov_b32 v15, v14")
    a("s_nop 0")
    a("v_permlane16_swap_b32 v12, v13")
    a("v_permlane32_swap_b32 v14, v15")
    a("v_add_f32 v12, v12, v13")
    a("v_add_f32 v14, v14, v15")
    a("v_mov_b32 v15, v14")
    a("s_nop 1")
    a("v_permlane16_swap_b32 v14, v15")
    a("v_add_f32 v14, v14, v15")
    for rr in (8, 4, 2, 1):
        a("s_nop 1")
        a(f"v_add_f32_dpp v14, v14, v14 row_ror:{rr} row_mask:0xf bank_mask:0xf")
    a("v_and_b32 v4, 63, v0")
    a("v_lshrrev_b32 v5, 5, v4")
    a("v_lshlrev_b32 v5, 6, v5")
    a("v_lshl_add_u32 v5, v2, 2, v5")
    a("s_lshl_b32 s61, s3, 7")
    a("v_add_u32 v5, s61, v5")
    a("ds_write_b32 v5, v12")
    a("s_lshl_b32 s61, s3, 2")
    a("v_mov_b32 v6, s61")
    a("ds_write_b32 v6, v14 offset:512")
    a("s_waitcnt lgkmcnt(0)")
    a("s_barrier")
    a("s_cmp_lg_u32 s3, 0")
    a("s_cbranch_scc1 L2_done")
    a("v_lshlrev_b32 v5, 2, v2")
    for w in range(4):
        a(f"ds_read_b32 v{16+w}, v5 offset:{w*128}")
        a(f"ds_read_b32 v{20+w}, v5 offset:{w*128+64}")
    a("v_mov_b32 v6, 0")
    a("ds_read_b128 v[24:27], v6 offset:512")
    a("s_waitcnt lgkmcnt(0)")
    a("v_add_f32 v16, v16, v17"); a("v_add_f32 v18, v18, v19"); a("v_add_f32 v16, v16, v18")
    a("v_add_f32 v20, v20, v21"); a("v_add_f32 v22, v22, v23"); a("v_add_f32 v20, v20, v22")
    a("v_add_f32 v24, v24, v25"); a("v_add_f32 v26, v26, v27"); a("v_add_f32 v24, v24, v26")
    def rbf(r):
        a(f"v_cvt_pk_bf16_f32 v{r}, v{r}, v{r}")
        a(f"v_lshlrev_b32 v{r}, 16, v{r}")
    rbf(16); rbf(20); rbf(24)
    a(f"v_mul_f32 v24, 0x{f2u(-LOG2E):08x}, v24")
    a("v_exp_f32 v24, v24")
    a("s_nop 0")
    a("v_add_f32 v24, 1.0, v24")
    a("v_rcp_f32 v24, v24")
    a("s_nop 0")
    rbf(24)
    a("v_sub_f32 v25, 1.0, v24")
    rbf(25)
    a("v_mul_f32 v16, v24, v16"); rbf(16)
    a("v_mul_f32 v20, v25, v20"); rbf(20)
    a("v_add_f32 v16, v16, v20")
    a("v_cvt_pk_bf16_f32 v16, v16, v16")
    a("s_lshl_b32 s61, s2, 5")
    a("v_lshlrev_b32 v5, 1, v2")
    a("v_cmp_gt_u32 vcc, 16, v0")
    a("s_and_saveexec_b64 s[70:71], vcc")
    a("buffer_store_short v16, v5, s[36:39], s61 offen")
    STAMP(1)
    STAMP_STORE(2, ["s_lshl_b32 s61, s2, 4", "s_add_u32 s61, s61, 131072"], SWS, 40)
    a.label("L2_done")
    a("s_endpgm")

    a.raw('.section .rodata,"a"')
    def kd(name, nv):
        a.raw(".p2align 6")
        a.raw(f".amdhsa_kernel {name}")
        a.raw(f"  .amdhsa_next_free_vgpr {nv}")
        a.raw("  .amdhsa_next_free_sgpr 102")
        a.raw(f"  .amdhsa_accum_offset {(nv+3)//4*4}")
        a.raw("  .amdhsa_group_segment_fixed_size 0")
        a.raw("  .amdhsa_kernarg_size 96")
        a.raw("  .amdhsa_user_sgpr_count 2")
        a.raw("  .amdhsa_user_sgpr_kernarg_segment_ptr 1")
        a.raw("  .amdhsa_system_sgpr_workgroup_id_x 1")
        a.raw(".end_amdhsa_kernel")
    kd("attn_kernel", NV1)
    kd("fin_kernel", 64)
    return "\n".join(a.L) + "\n"

if __name__ == "__main__":
    import argparse
    ap = argparse.ArgumentParser()
    ap.add_argument("-o", default=f"cdna_kernels/{KN}.s")
    ap.add_argument("--pol_kv", default="nt")
    ap.add_argument("--pol_w", default="")
    ap.add_argument("--nb", type=int, default=4)
    ap.add_argument("--nt", type=int, default=4)
    ap.add_argument("--mimic", action="store_true")
    ap.add_argument("--stamp", action="store_true")
    ap.add_argument("--ypace", type=int, default=2)
    ap.add_argument("--wops", type=int, default=2)
    ap.add_argument("--kpat", default="mc")
    ap.add_argument("--kpeel", default="c")
    ap.add_argument("--dbg", action="store_true")
    args = ap.parse_args()
    open(args.o, "w").write(gen(pol_kv=args.pol_kv, pol_w=args.pol_w, NB=args.nb, NT=args.nt, mimic=args.mimic,
                                stamp=args.stamp, ypace=args.ypace, wo_per_step=args.wops, kpat=args.kpat, kpeel=args.kpeel, dbg=args.dbg))
```

```python
import sys, math, struct

KN = "gated_mix__mha_block_cached__dense_activation_silu__decode"

def f2u(x):
    return struct.unpack("<I", struct.pack("<f", x))[0]

class Asm:
    def __init__(self):
        self.L = []
        self.q = []
    def __call__(self, s):
        self.L.append("  " + s)
    def label(self, s):
        self.L.append(s + ":")
    def raw(self, s):
        self.L.append(s)
    def vm(self, s, tag):
        self.L.append("  " + s)
        self.q.append(tag)
    def wait_vm(self, *tags):
        last = -1
        for i, t in enumerate(self.q):
            if t in tags:
                last = i
        if last < 0:
            return
        n = len(self.q) - 1 - last
        assert n <= 63, n
        self.L.append(f"  s_waitcnt vmcnt({n})")
        self.q = self.q[last + 1:]

WS_Y = 0
WS_ML = 512 * 1024
WS_BP = 1024 * 1024
WS_ST = 4 * 1024 * 1024
WS_BYTES = 536870912

LOG2E = 1.4426950408889634
SCALE = 128 ** -0.5
OOB = 0x40000000

def gen(pol_kv="nt", pol_w="", NB=4, NT=4, mimic=False, stamp=False, ypace=2, wo_per_step=2, kpat="mc", kpeel="c", dbg=False):
    a = Asm()
    D = NB - 1
    U = {2: 4, 3: 6, 4: 4}[NB]
    def STAMP(k):
        if stamp or dbg:
            a(f"s_memrealtime s[{90+2*k}:{91+2*k}]")
    def STAMP_STORE(n, base_expr_lines, srd, vtmp):
        if not (stamp or dbg): return
        a("s_waitcnt lgkmcnt(0)")
        for l in base_expr_lines: a(l)
        a(f"s_add_u32 s61, s61, {WS_ST}")
        for k in range(n):
            a(f"v_mov_b32 v{vtmp+1+k}, s{90+2*k}")
        a(f"v_mov_b32 v{vtmp}, 0")
        for k in range(n):
            a(f"buffer_store_dword v{vtmp+1+k}, v{vtmp}, s[{srd}:{srd+3}], s61 offen offset:{4*k}")

    hdr = open(f"cdna_kernels/{KN}.s.ref").read().split("; Override launch")[0]
    a.raw(hdr.rstrip())
    a.raw("; @launch kernel=attn_kernel grid=(256,1,1) block=(512,1,1) lds=147456")
    a.raw("; @launch kernel=fin_kernel grid=(64,1,1) block=(256,1,1) lds=1024")
    a.raw('.amdgcn_target "amdgcn-amd-amdhsa--gfx950"')
    a.raw(".text")

    a.raw(".globl attn_kernel")
    a.raw(".p2align 8")
    a.raw(".type attn_kernel,@function")
    a.label("attn_kernel")
    a("s_cmp_ge_u32 s2, 256")
    a("s_cbranch_scc1 L1_done")
    STAMP(0)
    a("s_load_dwordx16 s[4:19], s[0:1], 0")
    a("s_load_dwordx8 s[20:27], s[0:1], 64")
    a("v_lshrrev_b32 v1, 6, v0")
    a("v_and_b32 v0, 63, v0")
    a("s_nop 0")
    a("v_readfirstlane_b32 s3, v1")
    sSELLO, sSELHI, sC = 65, 66, 67
    a(f"s_mov_b32 s{sSELLO}, 0x05040100")
    a(f"s_mov_b32 s{sSELHI}, 0x07060302")
    if mimic:
        a(f"s_mov_b32 s{sC}, 0x{f2u(LOG2E):08x}")
        a(f"s_mov_b32 s68, 0x{f2u(SCALE):08x}")
    else:
        a(f"s_mov_b32 s{sC}, 0x{f2u(LOG2E * SCALE):08x}")
    a("s_and_b32 s60, s2, 7")
    a("s_lshr_b32 s61, s2, 3")
    a("s_and_b32 s62, s61, 3")
    a("s_lshl_b32 s62, s62, 3")
    a("s_add_u32 s62, s62, s60")
    a("s_lshr_b32 s61, s61, 2")
    a("s_lshr_b32 s63, s61, 2")
    a("s_and_b32 s64, s61, 3")

    vG, vCc, vKO, vVO = 1, 2, 3, 4
    vM, vL, vLD = 5, 6, 7
    vT = 8
    vQ = 24
    vO = 40
    vS = [48, 52]
    vQc = 52
    vR = 56
    vW = vR + 128
    vCA, vC1 = vW + 65, vW + 66
    NV1 = vW + 70
    assert NV1 <= 256 and NB <= 4 and NT <= 4
    def KB(buf): return vR + buf * 32
    def VB(buf): return vR + buf * 32 + 16

    L_QP, L_QB, L_OP, L_ML, L_CNT, L_P = 0, 2048, 4096, 8192, 8328, 8448
    L_W = 16384

    a(f"v_mov_b32 v{vCA}, 0")
    a(f"v_mov_b32 v{vC1}, 1")
    a(f"v_lshrrev_b32 v{vG}, 4, v0")
    a(f"v_and_b32 v{vCc}, 15, v0")
    a(f"v_lshlrev_b32 v{vKO}, 8, v{vCc}")
    a(f"v_lshl_add_u32 v{vKO}, v{vG}, 4, v{vKO}")
    a(f"v_lshlrev_b32 v{vVO}, 4, v{vCc}")
    a(f"v_lshl_add_u32 v{vVO}, v{vG}, 10, v{vVO}")
    a(f"v_and_b32 v{vT}, 1, v{vG}")
    a(f"v_lshrrev_b32 v{vT+1}, 1, v{vG}")
    a(f"v_lshlrev_b32 v{vLD}, 5, v{vCc}")
    a(f"v_lshl_add_u32 v{vLD}, v{vT}, 3, v{vLD}")
    a(f"v_lshl_add_u32 v{vLD}, v{vT+1}, 4, v{vLD}")
    a("s_lshl_b32 s61, s3, 9")
    a(f"v_add_u32 v{vLD}, s61, v{vLD}")
    a("s_lshl_b32 s60, s63, 5")
    a("s_add_u32 s60, s60, s62")
    a("s_lshl_b32 s60, s60, 21")
    a("s_lshl_b32 s61, s64, 19")
    a("s_add_u32 s60, s60, s61")
    a("s_lshl_b32 s71, s3, 14")
    a(f"s_add_u32 s71, s71, {L_W}")
    sFF, sB0 = 88, 89
    a("s_lshr_b32 s61, s2, 3")
    a("s_cmp_lt_u32 s61, 28")
    a(f"s_cselect_b32 s{sFF}, 1, 0")
    a(f"s_sub_u32 s{sB0}, {4*NT}, s{sFF}")
    sOFF = 72
    sWP, sTMP = 86, 87
    a(f"s_mov_b32 s{sWP}, 0")
    a("s_mov_b32 s84, 0")
    a("s_mov_b32 s82, 0")
    a("s_waitcnt lgkmcnt(0)")
    def srd(d, p, size):
        a(f"s_mov_b32 s{d}, s{p}")
        a(f"s_mov_b32 s{d+1}, s{p+1}")
        a(f"s_mov_b32 s{d+2}, 0x{size:x}")
        a(f"s_mov_b32 s{d+3}, 0x00020000")
    SX, SWQ, SK, SV, SWO, SWS, SW1, SW2 = 28, 32, 36, 40, 44, 48, 52, 56
    srd(SX, 4, 2048)
    srd(SWQ, 10, 512 * 4096 * 2)
    srd(SK, 6, 128 << 20)
    srd(SV, 8, 128 << 20)
    srd(SWO, 12, 4096 * 512 * 2)
    srd(SWS, 26, WS_BYTES)
    srd(SW1, 16, 512 * 1792 * 2)
    srd(SW2, 18, 1792 * 512 * 2)

    def issue_K(seq, buf, pat="c"):
        for j in range(4):
            r = KB(buf) + 4 * j
            if pat == "c":
                a.vm(f"buffer_load_dwordx4 v[{r}:{r+3}], v{vVO}, s[{SK}:{SK+3}], s{sOFF + seq % U} offen offset:{j*256} {pol_kv}", f"K{seq}")
            else:
                a.vm(f"buffer_load_dwordx4 v[{r}:{r+3}], v{vKO}, s[{SK}:{SK+3}], s{sOFF + seq % U} offen offset:{j*64} {pol_kv}", f"K{seq}")
    def issue_V(seq, buf):
        for r_ in range(4):
            r = VB(buf) + 4 * r_
            a.vm(f"buffer_load_dwordx4 v[{r}:{r+3}], v{vVO}, s[{SV}:{SV+3}], s{sOFF + seq % U} offen offset:{r_*256} {pol_kv}", f"V{seq}")

    vGR = vT + 15
    def grab_issue():
        a("s_mov_b64 exec, 1")
        a(f"ds_add_rtn_u32 v{vGR}, v{vCA}, v{vC1} offset:{L_CNT}")
        a("s_mov_b64 exec, -1")
    L_LOG = 12544
    vLG = NV1 - 1
    def grab_resolve(seq):
        a("s_waitcnt lgkmcnt(0)")
        a(f"v_readfirstlane_b32 s61, v{vGR}")
        if stamp:
            a(f"v_mov_b32 v{vT+12}, s61")
            a(f"v_mov_b32 v{vT+13}, s100")
            a(f"ds_write_b64 v{vLG}, v[{vT+12}:{vT+13}] offset:{L_LOG}")
            a(f"v_add_u32 v{vLG}, 8, v{vLG}")
            a("s_memrealtime s[100:101]")
        a(f"s_lshl_b32 s{sTMP}, s61, 12")
        a(f"s_add_u32 s{sTMP}, s{sTMP}, s60")
        a("s_cmp_lt_u32 s61, 128")
        a(f"s_cselect_b32 s{sOFF + seq % U}, s{sTMP}, 0x{OOB:x}")

    def reduce_scatter8(regs):
        a("s_nop 2")
        for i in range(4):
            a(f"v_permlane32_swap_b32 v{regs[i]}, v{regs[i+4]}")
        for i in range(4):
            a(f"v_add_f32 v{regs[i]}, v{regs[i]}, v{regs[i+4]}")
        a("s_nop 1")
        for i in range(2):
            a(f"v_permlane16_swap_b32 v{regs[i]}, v{regs[i+2]}")
        for i in range(2):
            a(f"v_add_f32 v{regs[i]}, v{regs[i]}, v{regs[i+2]}")

    def qfrag():
        a(f"v_lshlrev_b32 v{vT}, 3, v0")
        for w in range(4):
            a(f"ds_read_b64 v[{vQ+2*w}:{vQ+2*w+1}], v{vT} offset:{L_QP + w*512}")
        a("s_lshl_b32 s61, s3, 8")
        a(f"v_lshlrev_b32 v{vT+1}, 2, v0")
        a(f"v_add_u32 v{vT+1}, s61, v{vT+1}")
        a(f"v_lshlrev_b32 v{vT+2}, 4, v{vCc}")
        a(f"v_add_u32 v{vT+2}, s61, v{vT+2}")
        a(f"v_lshlrev_b32 v{vT+4}, 4, v{vG}")
        a(f"v_add_u32 v{vT+4}, s61, v{vT+4}")
        a("s_waitcnt lgkmcnt(0)")
        for (x, y) in ((0, 1), (2, 3), (0, 2)):
            a(f"v_add_f32 v{vQ+2*x}, v{vQ+2*x}, v{vQ+2*y}")
            a(f"v_add_f32 v{vQ+2*x+1}, v{vQ+2*x+1}, v{vQ+2*y+1}")
        a(f"v_cvt_pk_bf16_f32 v{vT+3}, v{vQ}, v{vQ+1}")
        a(f"ds_write_b32 v{vT+1}, v{vT+3} offset:{L_QB}")
        a("s_waitcnt lgkmcnt(0)")
        a(f"ds_read_b128 v[{vQc}:{vQc+3}], v{vT+2} offset:{L_QB}")
        for j in range(4):
            a(f"ds_read_b128 v[{vQ+4*j}:{vQ+4*j+3}], v{vT+4} offset:{L_QB + j*64}")
        a(f"v_mov_b32 v{vM}, 0x{f2u(-3.0e38):08x}")
        a(f"v_mov_b32 v{vL}, 0")
        for i in range(8):
            a(f"v_mov_b32 v{vO+i}, 0")
        a("s_waitcnt lgkmcnt(0)")

    def qk(kreg, S, pat="c"):
        if pat == "m":
            for j in range(4):
                c = "0" if j == 0 else f"v[{S}:{S+3}]"
                a(f"v_mfma_f32_16x16x32_bf16 v[{S}:{S+3}], v[{kreg+4*j}:{kreg+4*j+3}], v[{vQ+4*j}:{vQ+4*j+3}], {c}")
            a("s_nop 7")
            return
        for d in range(4):
            for r in range(4):
                c = "0" if d == 0 else f"v{S+r}"
                a(f"v_dot2_f32_bf16 v{S+r}, v{kreg+4*r+d}, v{vQc+d}, {c}")
        a("s_nop 0")
        for rr in (8, 4, 2, 1):
            for r in range(4):
                a(f"v_add_f32_dpp v{S+r}, v{S+r}, v{S+r} row_ror:{rr} row_mask:0xf bank_mask:0xf")

    mN, al, mc, ps, t1, t2, P01, P23 = vT, vT + 1, vT + 2, vT + 4, vT + 8, vT + 9, vT + 10, vT + 11
    pt = [vT + 12, vT + 13, vT + 14, vT + 3]
    def softmax_pv(S, vreg):
        if mimic:
            for h2 in range(2):
                a(f"v_cvt_pk_bf16_f32 v{t1}, v{S+2*h2}, v{S+2*h2+1}")
                a(f"v_lshlrev_b32 v{S+2*h2}, 16, v{t1}")
                a(f"v_and_b32 v{S+2*h2+1}, 0xffff0000, v{t1}")
                a(f"v_mul_f32 v{S+2*h2}, s68, v{S+2*h2}")
                a(f"v_mul_f32 v{S+2*h2+1}, s68, v{S+2*h2+1}")
                a(f"v_cvt_pk_bf16_f32 v{t1}, v{S+2*h2}, v{S+2*h2+1}")
                a(f"v_lshlrev_b32 v{S+2*h2}, 16, v{t1}")
                a(f"v_and_b32 v{S+2*h2+1}, 0xffff0000, v{t1}")
        a(f"v_max3_f32 v{mN}, v{S}, v{S+1}, v{vM}")
        a(f"v_max3_f32 v{mN}, v{S+2}, v{S+3}, v{mN}")
        a(f"v_sub_f32 v{al}, v{vM}, v{mN}")
        a(f"v_mul_f32 v{mc}, s{sC}, v{mN}")
        a(f"v_mul_f32 v{al}, s{sC}, v{al}")
        for i in range(4):
            a(f"v_fma_f32 v{ps+i}, v{S+i}, s{sC}, -v{mc}")
        a(f"v_exp_f32 v{al}, v{al}")
        for i in range(4):
            a(f"v_exp_f32 v{ps+i}, v{ps+i}")
        a(f"v_mov_b32 v{vM}, v{mN}")
        for i in range(8):
            a(f"v_mul_f32 v{vO+i}, v{al}, v{vO+i}")
        a(f"v_cvt_pk_bf16_f32 v{P01}, v{ps}, v{ps+1}")
        a(f"v_cvt_pk_bf16_f32 v{P23}, v{ps+2}, v{ps+3}")
        a(f"v_add_f32 v{t1}, v{ps}, v{ps+1}")
        a(f"v_add_f32 v{t2}, v{ps+2}, v{ps+3}")
        a(f"v_add_f32 v{t1}, v{t1}, v{t2}")
        a(f"v_fma_f32 v{vL}, v{vL}, v{al}, v{t1}")
        for pr, P in ((0, P01), (2, P23)):
            r0, r1 = vreg + 4 * pr, vreg + 4 * (pr + 1)
            for d in range(4):
                tl, th = pt[2 * (d & 1)], pt[2 * (d & 1) + 1]
                a(f"v_perm_b32 v{tl}, v{r1+d}, v{r0+d}, s{sSELLO}")
                a(f"v_perm_b32 v{th}, v{r1+d}, v{r0+d}, s{sSELHI}")
                a(f"v_dot2_f32_bf16 v{vO+2*d}, v{tl}, v{P}, v{vO+2*d}")
                a(f"v_dot2_f32_bf16 v{vO+2*d+1}, v{th}, v{P}, v{vO+2*d+1}")

    vWA = vW + 67
    def wo_setup():
        a(f"v_lshrrev_b32 v{vWA}, 3, v0")
        a(f"v_lshlrev_b32 v{vWA}, 10, v{vWA}")
        a(f"v_and_b32 v{vT+12}, 7, v0")
        a(f"v_lshl_add_u32 v{vWA}, v{vT+12}, 4, v{vWA}")
        a("s_lshl_b32 s83, s62, 17")
        a("s_lshl_b32 s61, s3, 7")
        a("s_add_u32 s83, s83, s61")
    def wo_piece(n, track):
        sl, i = n >> 4, n & 15
        a(f"s_add_u32 m0, s71, {sl*65536 + i*1024}")
        a(f"s_add_u32 s61, s83, {sl*512 + i*8192}")
        ins = f"buffer_load_dwordx4 v{vWA}, s[{SWO}:{SWO+3}], s61 offen lds {pol_w}"
        if track: a.vm(ins, "wo")
        else: a(ins)
    def wo_flag_set():
        a("s_lshl_b32 s61, s3, 2")
        a(f"v_mov_b32 v{vT+12}, s61")
        a(f"ds_write_b32 v{vT+12}, v{vC1} offset:{L_CNT+8}")
    def wo_flag_wait():
        n = npoll[0]; npoll[0] += 1
        a("s_sub_u32 s61, s3, 4")
        a("s_lshl_b32 s61, s61, 2")
        a(f"v_mov_b32 v{vT+1}, s61")
        a.label(f"L1_poll{n}")
        a(f"ds_read_b32 v{vT}, v{vT+1} offset:{L_CNT+8}")
        a("s_waitcnt lgkmcnt(0)")
        a(f"v_readfirstlane_b32 s61, v{vT}")
        a("s_cmp_eq_u32 s61, 1")
        a(f"s_cbranch_scc1 L1_polled{n}")
        a("s_sleep 8")
        a(f"s_branch L1_poll{n}")
        a.label(f"L1_polled{n}")
    npoll = [0]

    Wlo = [None] * 32; Whi = [None] * 32
    def wperm():
        a(f"v_and_b32 v{vT+12}, 31, v0")
        a(f"v_lshrrev_b32 v{vT+13}, 5, v0")
        a(f"v_lshlrev_b32 v{vT+13}, 13, v{vT+13}")
        a(f"v_lshl_add_u32 v{vT+13}, v{vT+12}, 2, v{vT+13}")
        a(f"v_add_u32 v{vT+13}, s71, v{vT+13}")
        free = vW + 64
        for r in range(64):
            a(f"ds_read_b32 v{vW+r}, v{vT+13} offset:{r*128}")
        a("s_waitcnt lgkmcnt(0)")
        for p in range(32):
            r0, r1 = vW + 2 * p, vW + 2 * p + 1
            a(f"v_perm_b32 v{free}, v{r1}, v{r0}, s{sSELLO}")
            a(f"v_perm_b32 v{r1}, v{r1}, v{r0}, s{sSELHI}")
            Wlo[p] = free; Whi[p] = r1
            free = r0
        a(f"s_mov_b32 s{sWP}, 1")

    def young_tiles_issue(n):
        for i in range(n):
            if ypace and i >= ypace:
                a.wait_vm(f"V{i-ypace}")
            issue_K(i, i)
            issue_V(i, i)
    def young_tiles_process(n):
        for i in range(n):
            a.wait_vm(f"K{i}")
            qk(KB(i), vS[0])
            a.wait_vm(f"V{i}")
            softmax_pv(vS[0], VB(i))

    a(f"s_add_u32 s61, s{sB0}, {4*D}")
    a(f"v_mov_b32 v{vT+6}, s61")
    for i in range(7, 12):
        a(f"v_mov_b32 v{vT+i}, 0")
    a(f"ds_write_b64 v{vCA}, v[{vT+6}:{vT+7}] offset:{L_CNT}")
    a(f"ds_write_b128 v{vCA}, v[{vT+8}:{vT+11}] offset:{L_CNT+8}")
    a("s_waitcnt lgkmcnt(0)")
    a("s_barrier")
    def q_wait():
        n = npoll[0]; npoll[0] += 1
        a.label(f"L1_poll{n}")
        a(f"ds_read_b32 v{vT}, v{vCA} offset:{L_CNT+4}")
        a("s_waitcnt lgkmcnt(0)")
        a(f"v_readfirstlane_b32 s61, v{vT}")
        a("s_cmp_ge_u32 s61, 4")
        a(f"s_cbranch_scc1 L1_polled{n}")
        a("s_sleep 1")
        a(f"s_branch L1_poll{n}")
        a.label(f"L1_polled{n}")
    a("s_cmp_lt_u32 s3, 4")
    a("s_cbranch_scc1 L1_pathA")
    a("s_setprio 2")
    a("s_add_u32 s61, s3, 3")
    a("s_and_b32 s61, s61, 3")
    a(f"s_mul_i32 s61, s61, {NT*4096}")
    a(f"s_add_u32 s{sOFF}, s60, s61")
    for k in range(1, NT):
        a(f"s_add_u32 s{sOFF+k}, s{sOFF}, {k*4096}")
    a("s_cmp_eq_u32 s3, 4")
    a("s_cbranch_scc0 L1_pathB")
    a(f"s_cmp_eq_u32 s{sFF}, 1")
    a("s_cbranch_scc0 L1_pathB")

    a.q = []
    fB = vR + (NT - 1) * 32
    fW1, fW2, fX, fA, fT = fB, fB + 32, fB + 64, fB + 72, fB + 88
    assert fT + 4 <= vCA
    a("s_lshr_b32 s61, s2, 3")
    a("s_and_b32 s69, s2, 7")
    a("s_mul_i32 s69, s69, 28")
    a("s_add_u32 s85, s69, s61")
    a("s_mov_b32 s61, 28672")
    a(f"v_mul_lo_u32 v{vT}, v0, s61")
    a(f"v_lshlrev_b32 v{vT+1}, 4, v0")
    for b in range(2):
        a.vm(f"buffer_load_dwordx4 v[{fX+4*b}:{fX+4*b+3}], v{vT+1}, s[{SX}:{SX+3}], 0 offen offset:{b*1024}", "f")
    a("s_lshl_b32 s70, s85, 4")
    for i in range(8):
        if i & 1 == 0:
            a(f"s_add_u32 s61, s70, {i*3584}")
        a.vm(f"buffer_load_dwordx4 v[{fW1+4*i}:{fW1+4*i+3}], v{vT}, s[{SW1}:{SW1+3}], s61 offen offset:{(i&1)*3584} {pol_w}", "f")
    a("s_lshl_b32 s70, s85, 13")
    for j in range(8):
        if j & 3 == 0:
            a(f"s_add_u32 s61, s70, {j*1024}")
        a.vm(f"buffer_load_dwordx4 v[{fW2+4*j}:{fW2+4*j+3}], v{vT+1}, s[{SW2}:{SW2+3}], s61 offen offset:{(j&3)*1024} {pol_w}", "f")
    young_tiles_issue(NT - 1)
    q_wait()
    qfrag()
    STAMP(1)
    young_tiles_process(NT - 1)
    for i in range(16):
        a(f"v_mov_b32 v{fA+i}, 0")
    def f_compute(W, xs):
        for p in range(4):
            r0, r1 = W + 8 * p, W + 8 * p + 4
            for d in range(4):
                tl, th = fT + 2 * (d & 1), fT + 1 + 2 * (d & 1)
                a(f"v_perm_b32 v{tl}, v{r1+d}, v{r0+d}, s{sSELLO}")
                a(f"v_perm_b32 v{th}, v{r1+d}, v{r0+d}, s{sSELHI}")
                for b in range(2):
                    a(f"v_dot2_f32_bf16 v{fA+b*8+2*d}, v{tl}, {xs(b,p)}, v{fA+b*8+2*d}")
                    a(f"v_dot2_f32_bf16 v{fA+b*8+2*d+1}, v{th}, {xs(b,p)}, v{fA+b*8+2*d+1}")
    f_compute(fW1, lambda b, p: f"v{fX+4*b+p}")
    a("s_nop 2")
    for i in range(8):
        a(f"v_permlane32_swap_b32 v{fA+i}, v{fA+i+8}")
    for i in range(8):
        a(f"v_add_f32 v{fA+i}, v{fA+i}, v{fA+i+8}")
    a("s_nop 1")
    for i in range(4):
        a(f"v_permlane16_swap_b32 v{fA+i}, v{fA+i+4}")
    for i in range(4):
        a(f"v_add_f32 v{fA+i}, v{fA+i}, v{fA+i+4}")
    for rr in (8, 4, 2, 1):
        a("s_nop 1")
        for i in range(4):
            a(f"v_add_f32_dpp v{fA+i}, v{fA+i}, v{fA+i} row_ror:{rr} row_mask:0xf bank_mask:0xf")
    for i in range(4):
        a(f"v_cvt_pk_bf16_f32 v{fA+i}, v{fA+i}, v{fA+i}")
    for i in range(4):
        a(f"v_lshlrev_b32 v{fA+i}, 16, v{fA+i}")
    for i in range(4):
        a(f"v_mul_f32 v{fA+4+i}, 0x{f2u(-LOG2E):08x}, v{fA+i}")
    for i in range(4):
        a(f"v_exp_f32 v{fA+4+i}, v{fA+4+i}")
    a("s_nop 0")
    for i in range(4):
        a(f"v_add_f32 v{fA+4+i}, 1.0, v{fA+4+i}")
    for i in range(4):
        a(f"v_rcp_f32 v{fA+4+i}, v{fA+4+i}")
    a("s_nop 0")
    for i in range(4):
        a(f"v_mul_f32 v{fA+i}, v{fA+i}, v{fA+4+i}")
    a(f"v_cvt_pk_bf16_f32 v{fA+8}, v{fA}, v{fA+1}")
    a(f"v_cvt_pk_bf16_f32 v{fA+9}, v{fA+2}, v{fA+3}")
    a("s_nop 0")
    sH = 72
    for g in range(4):
        for k in range(2):
            a(f"v_readlane_b32 s{sH + (g>>1)*4 + (g&1)*2 + k}, v{fA+8+k}, {16*g}")
    for i in range(16):
        a(f"v_mov_b32 v{fA+i}, 0")
    f_compute(fW2, lambda b, p: f"s{sH+4*b+p}")
    fK = vR + 64
    a("s_nop 2")
    for i in range(16):
        a(f"v_mov_b32 v{fK+i}, v{fA+i}")
    a(f"v_lshrrev_b32 v{fK+16}, 1, v0")
    a(f"v_lshlrev_b32 v{fK+16}, 14, v{fK+16}")
    a(f"v_and_b32 v{fK+17}, 1, v0")
    a(f"v_lshl_add_u32 v{fK+16}, v{fK+17}, 5, v{fK+16}")
    a("s_mov_b32 s84, 1")
    a("s_branch L1_yexit")

    a.q = []
    a.label("L1_pathB")
    young_tiles_issue(NT)
    q_wait()
    qfrag()
    STAMP(1)
    young_tiles_process(NT)
    a.label("L1_yexit")
    STAMP(2)
    wo_flag_wait()
    wperm()
    a("s_branch L1_comb")

    a.q = []
    a.label("L1_pathA")
    a("s_setprio 3")
    vX = vW
    a(f"v_lshlrev_b32 v{vT}, 6, v{vG}")
    a("s_lshl_b32 s61, s63, 10")
    a("s_lshl_b32 s69, s3, 8")
    a("s_add_u32 s61, s61, s69")
    for k in range(4):
        a.vm(f"buffer_load_dwordx4 v[{vX+4*k}:{vX+4*k+3}], v{vT}, s[{SX}:{SX+3}], s61 offen offset:{16*k}", "x")
    a(f"v_lshlrev_b32 v{vT+1}, 4, v{vCc}")
    a(f"v_lshl_add_u32 v{vT+1}, v{vG}, 18, v{vT+1}")
    a("s_lshl_b32 s61, s3, 20")
    a("s_lshl_b32 s69, s62, 8")
    a("s_add_u32 s61, s61, s69")
    for i in range(32):
        if i > 0:
            a("s_add_u32 s61, s61, 8192")
        r = vR + 4 * i
        a.vm(f"buffer_load_dwordx4 v[{r}:{r+3}], v{vT+1}, s[{SWQ}:{SWQ+3}], s61 offen {pol_w}", f"wq{i}")
    acc = [vS[0] + i for i in range(4)] + [vS[1] + i for i in range(4)]
    for i in range(8):
        a(f"v_mov_b32 v{acc[i]}, 0")
    a(f"s_add_u32 s61, s{sB0}, s3")
    a("s_lshl_b32 s61, s61, 12")
    a(f"s_add_u32 s{sOFF}, s60, s61")
    for k in range(1, D):
        a(f"s_add_u32 s{sOFF+k}, s{sOFF}, {k*4*4096}")
    for p in range(16):
        a.wait_vm("x", f"wq{2*p+1}")
        r0 = vR + 8 * p; r1 = r0 + 4
        for d in range(4):
            tl, th = vT + 2 + 2 * (d & 1), vT + 3 + 2 * (d & 1)
            a(f"v_perm_b32 v{tl}, v{r1+d}, v{r0+d}, s{sSELLO}")
            a(f"v_perm_b32 v{th}, v{r1+d}, v{r0+d}, s{sSELHI}")
            a(f"v_dot2_f32_bf16 v{acc[2*d]}, v{tl}, v{vX+p}, v{acc[2*d]}")
            a(f"v_dot2_f32_bf16 v{acc[2*d+1]}, v{th}, v{vX+p}, v{acc[2*d+1]}")
    reduce_scatter8(acc)
    a(f"ds_write_b64 v{vLD}, v[{acc[0]}:{acc[1]}] offset:{L_QP}")
    a("s_waitcnt lgkmcnt(0)")
    a("s_mov_b64 exec, 1")
    a(f"ds_add_u32 v{vCA}, v{vC1} offset:{L_CNT+4}")
    a("s_mov_b64 exec, -1")
    a.q = []
    q_wait()
    qfrag()
    a("s_setprio 0")
    STAMP(1)
    if stamp:
        a("s_lshl_b32 s61, s3, 9")
        a(f"v_mov_b32 v{vLG}, s61")
        a("s_memrealtime s[100:101]")
    grab_issue()
    for t in range(D):
        issue_K(t, t)
        issue_V(t, t)
    wo_setup()
    npeel = -(-32 // (U * wo_per_step))
    def patof(seq):
        if seq < npeel * U: return kpeel[seq % len(kpeel)]
        return kpat[(seq % U) % len(kpat)]
    assert U % len(kpat) == 0
    piece = 0
    for ps_ in range(npeel):
        for k in range(U):
            seq = ps_ * U + k
            grab_resolve(k + D)
            grab_issue()
            issue_K(seq + D, (k + D) % NB, patof(seq + D))
            issue_V(seq + D, (k + D) % NB)
            for _ in range(wo_per_step):
                if piece < 32:
                    wo_piece(piece, True); piece += 1
            buf = k % NB
            a.wait_vm(f"K{seq}")
            qk(KB(buf), vS[0], patof(seq) if seq >= D else "c")
            a.wait_vm(f"V{seq}")
            softmax_pv(vS[0], VB(buf))
            a(f"s_cmp_eq_u32 s{sOFF + (k+1) % U}, 0x{OOB:x}")
            a("s_cbranch_scc1 L1_exit")
    a("s_mov_b32 s82, 1")
    a.label("L1_body")
    for k in range(U):
        grab_resolve(k + D)
        grab_issue()
        issue_K(k + D, (k + D) % NB, patof(npeel * U + k + D))
        issue_V(k + D, (k + D) % NB)
        buf = k % NB
        a(f"s_waitcnt vmcnt({8*D+4})")
        qk(KB(buf), vS[0], patof(npeel * U + k))
        a(f"s_waitcnt vmcnt({8*D})")
        softmax_pv(vS[0], VB(buf))
        a(f"s_cmp_eq_u32 s{sOFF + (k+1) % U}, 0x{OOB:x}")
        a("s_cbranch_scc1 L1_exit")
    a(f"s_cmp_eq_u32 s{sWP}, 1")
    a("s_cbranch_scc1 L1_body")
    a("s_waitcnt lgkmcnt(0)")
    wo_flag_set()
    wperm()
    a("s_branch L1_body")
    a.label("L1_exit")
    STAMP(2)
    a(f"s_cmp_eq_u32 s{sWP}, 1")
    a("s_cbranch_scc1 L1_comb")
    a("s_cmp_eq_u32 s82, 1")
    a("s_cbranch_scc1 L1_wo_issued")
    for n in range(32):
        wo_piece(n, False)
    a.label("L1_wo_issued")
    a("s_waitcnt vmcnt(0) lgkmcnt(0)")
    wo_flag_set()
    wperm()
    a.label("L1_comb")

    x1, x2, MW, f = vT, vT + 1, vT + 2, vT + 3
    a(f"v_mov_b32 v{x1}, v{vM}")
    a(f"v_mov_b32 v{x2}, v{vM}")
    a("s_nop 1")
    a(f"v_permlane32_swap_b32 v{x1}, v{x2}")
    a(f"v_max_f32 v{x1}, v{x1}, v{x2}")
    a(f"v_mov_b32 v{x2}, v{x1}")
    a("s_nop 1")
    a(f"v_permlane16_swap_b32 v{x1}, v{x2}")
    a(f"v_max_f32 v{MW}, v{x1}, v{x2}")
    a(f"v_sub_f32 v{f}, v{vM}, v{MW}")
    a(f"v_mul_f32 v{f}, s{sC}, v{f}")
    a(f"v_exp_f32 v{f}, v{f}")
    a("s_nop 0")
    a(f"v_mul_f32 v{x1}, v{f}, v{vL}")
    a(f"v_mul_f32 v{x2}, v{f}, v{vL}")
    for i in range(8):
        a(f"v_mul_f32 v{vO+i}, v{f}, v{vO+i}")
    a(f"v_permlane32_swap_b32 v{x1}, v{x2}")
    a(f"v_add_f32 v{x1}, v{x1}, v{x2}")
    a(f"v_mov_b32 v{x2}, v{x1}")
    a("s_nop 1")
    a(f"v_permlane16_swap_b32 v{x1}, v{x2}")
    a(f"v_add_f32 v{MW+1}, v{x1}, v{x2}")
    reduce_scatter8([vO + i for i in range(8)])
    a(f"ds_write_b64 v{vLD}, v[{vO}:{vO+1}] offset:{L_OP}")
    a("s_lshl_b32 s61, s3, 3")
    a(f"v_mov_b32 v{x1}, s61")
    a(f"ds_write_b64 v{x1}, v[{MW}:{MW+1}] offset:{L_ML}")
    aOP, aPW, aPR, aY = vM, vL, vS[0], vKO
    a(f"v_lshlrev_b32 v{aOP}, 3, v0")
    a("s_lshl_b32 s61, s3, 9")
    a(f"s_add_u32 s61, s61, {L_P}")
    a(f"v_lshlrev_b32 v{aPW}, 2, v0")
    a(f"v_add_u32 v{aPW}, s61, v{aPW}")
    a(f"v_lshrrev_b32 v{aPR}, 5, v0")
    a(f"v_lshlrev_b32 v{aPR}, 7, v{aPR}")
    a(f"v_add_u32 v{aPR}, s61, v{aPR}")
    a(f"v_and_b32 v{x2}, 31, v0")
    a(f"v_lshrrev_b32 v{vT+4}, 3, v{x2}")
    a(f"v_lshlrev_b32 v{aY}, 13, v{vT+4}")
    a(f"v_and_b32 v{x2}, 7, v{x2}")
    a(f"v_lshl_add_u32 v{aY}, v{x2}, 3, v{aY}")
    a(f"v_lshrrev_b32 v{x2}, 5, v0")
    a(f"v_lshl_add_u32 v{aY}, v{x2}, 2, v{aY}")
    a("s_lshl_b32 s61, s63, 5")
    a("s_lshl_b32 s69, s3, 2")
    a("s_add_u32 s61, s61, s69")
    a("s_lshl_b32 s61, s61, 13")
    a("s_lshl_b32 s69, s62, 2")
    a("s_add_u32 s69, s69, s64")
    a("s_lshl_b32 s70, s69, 6")
    a("s_add_u32 s60, s61, s70")
    a("s_waitcnt vmcnt(0) lgkmcnt(0)")
    a("s_barrier")
    STAMP(4)
    a(f"v_mov_b32 v{x1}, 0")
    for i in range(4):
        a(f"ds_read_b128 v[{vQ+4*i}:{vQ+4*i+3}], v{x1} offset:{L_ML + 16*i}")
    op = [vR + 2 * w for w in range(8)]
    for w in range(8):
        a(f"ds_read_b64 v[{op[w]}:{op[w]+1}], v{aOP} offset:{L_OP + w*512}")
    a("s_waitcnt lgkmcnt(8)")
    Mt, Lt = vT + 4, vT + 5
    a(f"v_max3_f32 v{Mt}, v{vQ}, v{vQ+2}, v{vQ+4}")
    a(f"v_max3_f32 v{Mt}, v{vQ+6}, v{vQ+8}, v{Mt}")
    a(f"v_max3_f32 v{Mt}, v{vQ+10}, v{vQ+12}, v{Mt}")
    a(f"v_max_f32 v{Mt}, v{vQ+14}, v{Mt}")
    for w in range(8):
        a(f"v_sub_f32 v{vQ+2*w}, v{vQ+2*w}, v{Mt}")
    for w in range(8):
        a(f"v_mul_f32 v{vQ+2*w}, s{sC}, v{vQ+2*w}")
    for w in range(8):
        a(f"v_exp_f32 v{vQ+2*w}, v{vQ+2*w}")
    a("s_waitcnt lgkmcnt(0)")
    o0, o1, hi, lo = vT + 6, vT + 7, vT + 8, vT + 9
    a(f"v_mul_f32 v{o0}, v{vQ}, v{op[0]}")
    a(f"v_mul_f32 v{o1}, v{vQ}, v{op[0]+1}")
    for w in range(1, 8):
        a(f"v_fma_f32 v{o0}, v{vQ+2*w}, v{op[w]}, v{o0}")
        a(f"v_fma_f32 v{o1}, v{vQ+2*w}, v{op[w]+1}, v{o1}")
    a(f"v_cvt_pk_bf16_f32 v{hi}, v{o0}, v{o1}")
    a(f"v_lshlrev_b32 v{x1}, 16, v{hi}")
    a(f"v_and_b32 v{x2}, 0xffff0000, v{hi}")
    a(f"v_sub_f32 v{o0}, v{o0}, v{x1}")
    a(f"v_sub_f32 v{o1}, v{o1}, v{x2}")
    a(f"v_cvt_pk_bf16_f32 v{lo}, v{o0}, v{o1}")
    a(f"ds_write_b32 v{aPW}, v{hi}")
    a(f"ds_write_b32 v{aPW}, v{lo} offset:256")
    a(f"v_mul_f32 v{Lt}, v{vQ}, v{vQ+1}")
    for w in range(1, 8):
        a(f"v_fma_f32 v{Lt}, v{vQ+2*w}, v{vQ+2*w+1}, v{Lt}")
    a("s_waitcnt lgkmcnt(0)")
    OH, OL = vR, vR + 32
    for k in range(8):
        a(f"ds_read_b128 v[{OH+4*k}:{OH+4*k+3}], v{aPR} offset:{16*k}")
    for k in range(8):
        a(f"ds_read_b128 v[{OL+4*k}:{OL+4*k+3}], v{aPR} offset:{256+16*k}")
    ac = [vO + i for i in range(8)]
    for k in range(8):
        a(f"s_waitcnt lgkmcnt({15 - k})")
        for p in range(4 * k, 4 * k + 4):
            j = 2 * (p & 1)
            c0 = "0" if p < 2 else f"v{ac[j]}"
            c1 = "0" if p < 2 else f"v{ac[j+1]}"
            a(f"v_dot2_f32_bf16 v{ac[j]}, v{Wlo[p]}, v{OH+p}, {c0}")
            a(f"v_dot2_f32_bf16 v{ac[j+1]}, v{Whi[p]}, v{OH+p}, {c1}")
    for k in range(8):
        a(f"s_waitcnt lgkmcnt({7 - k})")
        for p in range(4 * k, 4 * k + 4):
            j = 4 + 2 * (p & 1)
            c0 = "0" if p < 2 else f"v{ac[j]}"
            c1 = "0" if p < 2 else f"v{ac[j+1]}"
            a(f"v_dot2_f32_bf16 v{ac[j]}, v{Wlo[p]}, v{OL+p}, {c0}")
            a(f"v_dot2_f32_bf16 v{ac[j+1]}, v{Whi[p]}, v{OL+p}, {c1}")
    a("s_nop 2")
    a(f"v_add_f32 v{ac[0]}, v{ac[0]}, v{ac[2]}")
    a(f"v_add_f32 v{ac[1]}, v{ac[1]}, v{ac[3]}")
    a(f"v_add_f32 v{ac[4]}, v{ac[4]}, v{ac[6]}")
    a(f"v_add_f32 v{ac[5]}, v{ac[5]}, v{ac[7]}")
    a(f"v_add_f32 v{ac[0]}, v{ac[0]}, v{ac[4]}")
    a(f"v_add_f32 v{ac[1]}, v{ac[1]}, v{ac[5]}")
    a("s_nop 1")
    a(f"v_permlane32_swap_b32 v{ac[0]}, v{ac[1]}")
    a(f"v_add_f32 v{ac[0]}, v{ac[0]}, v{ac[1]}")
    a(f"buffer_store_dword v{ac[0]}, v{aY}, s[{SWS}:{SWS+3}], s60 offen")
    STAMP(3)
    STAMP_STORE(6, ["s_lshl_b32 s61, s2, 4", "s_add_u32 s61, s61, s3", "s_lshl_b32 s61, s61, 5"], SWS, vQ)
    if stamp:
        a("s_cmp_ge_u32 s3, 4")
        a("s_cbranch_scc1 L1_nolog")
        a("s_lshl_b32 s61, s3, 9")
        a(f"v_lshlrev_b32 v{vQ}, 3, v0")
        a(f"v_add_u32 v{vQ+1}, s61, v{vQ}")
        a(f"ds_read_b64 v[{vQ+2}:{vQ+3}], v{vQ+1} offset:{L_LOG}")
        a("s_lshl_b32 s70, s2, 11")
        a("s_add_u32 s61, s61, s70")
        a(f"s_add_u32 s61, s61, {WS_ST + 262144}")
        a("s_waitcnt lgkmcnt(0)")
        a(f"buffer_store_dwordx2 v[{vQ+2}:{vQ+3}], v{vQ}, s[{SWS}:{SWS+3}], s61 offen")
        a.label("L1_nolog")
    a("s_cmp_eq_u32 s84, 1")
    a("s_cbranch_scc0 L1_noffn")
    a("s_lshl_b32 s61, s85, 6")
    a(f"s_add_u32 s61, s61, {WS_BP}")
    a(f"s_add_u32 s70, s61, {32*256*64}")
    for b in range(2):
        so = "s61" if b == 0 else "s70"
        a(f"buffer_store_dwordx4 v[{fK+b*8}:{fK+b*8+3}], v{fK+16}, s[{SWS}:{SWS+3}], {so} offen")
        a(f"buffer_store_dwordx4 v[{fK+b*8+4}:{fK+b*8+7}], v{fK+16}, s[{SWS}:{SWS+3}], {so} offen offset:16")
    a.label("L1_noffn")
    a("s_cmp_lg_u32 s3, 0")
    a("s_cbranch_scc1 L1_done")
    a("s_lshl_b32 s61, s63, 7")
    a("s_add_u32 s61, s61, s69")
    a("s_lshl_b32 s61, s61, 3")
    a(f"s_add_u32 s61, s61, {WS_ML}")
    a(f"v_mov_b32 v{x1}, 0")
    a("v_cmp_eq_u32 vcc, 0, v0")
    a("s_and_saveexec_b64 s[70:71], vcc")
    assert Mt % 2 == 0 and Lt == Mt + 1
    a(f"buffer_store_dwordx2 v[{Mt}:{Lt}], v{x1}, s[{SWS}:{SWS+3}], s61 offen")
    a.label("L1_done")
    a("s_endpgm")

    a.q = []
    a.raw(".globl fin_kernel")
    a.raw(".p2align 8")
    a.raw(".type fin_kernel,@function")
    a.label("fin_kernel")
    a("s_cmp_ge_u32 s2, 64")
    a("s_cbranch_scc1 L2_done")
    STAMP(0)
    a("s_load_dwordx2 s[4:5], s[0:1], 0")
    a("s_load_dwordx8 s[20:27], s[0:1], 64")
    a("v_lshrrev_b32 v1, 6, v0")
    a("v_and_b32 v2, 15, v0")
    a("v_lshrrev_b32 v3, 4, v0")
    a("v_readfirstlane_b32 s3, v1")
    a("s_lshr_b32 s63, s2, 5")
    a("v_lshlrev_b32 v4, 2, v2")
    a("v_lshl_add_u32 v4, v3, 9, v4")
    a("v_lshlrev_b32 v5, 6, v3")
    a("v_mul_u32_u24 v6, 896, v3")
    a("v_lshl_add_u32 v6, v2, 2, v6")
    a("v_lshlrev_b32 v7, 2, v0")
    a("s_lshl_b32 s60, s2, 13")
    a("s_lshl_b32 s61, s63, 10")
    a(f"s_add_u32 s62, s61, {WS_ML}")
    a("s_lshl_b32 s64, s2, 14")
    a(f"s_add_u32 s64, s64, {WS_BP}")
    a("s_waitcnt lgkmcnt(0)")
    srd(SWS, 26, WS_BYTES)
    srd(SX, 4, 2048)
    srd(32, 20, 1024)
    srd(36, 22, 2048)
    ML = 24
    for i in range(4):
        a.vm(f"buffer_load_dwordx4 v[{ML+4*i}:{ML+4*i+3}], v5, s[{SWS}:{SWS+3}], s62 offen offset:{i*16}", "ml")
    Y = 16
    for i in range(8):
        a.vm(f"buffer_load_dword v{Y+i}, v4, s[{SWS}:{SWS+3}], s60 offen offset:{i*64}", "y")
    BP = 40
    for i in range(14):
        a.vm(f"buffer_load_dword v{BP+i}, v6, s[{SWS}:{SWS+3}], s64 offen offset:{i*64}", "bp")
    a.vm(f"buffer_load_dword v54, v7, s[{SX}:{SX+3}], s61 offen", "g")
    a.vm("buffer_load_dword v55, v7, s[32:35], 0 offen", "g")
    sC2 = 67
    a(f"s_mov_b32 s{sC2}, 0x{f2u(LOG2E if mimic else LOG2E * SCALE):08x}")
    a.wait_vm("ml")
    for hh in range(2):
        B = ML + hh * 8
        Mx, Ls = 8 + hh * 2, 9 + hh * 2
        a(f"v_max3_f32 v{Mx}, v{B}, v{B+2}, v{B+4}")
        a(f"v_max_f32 v{Mx}, v{B+6}, v{Mx}")
        for s_ in range(4):
            a(f"v_sub_f32 v{B+2*s_}, v{B+2*s_}, v{Mx}")
        for s_ in range(4):
            a(f"v_mul_f32 v{B+2*s_}, s{sC2}, v{B+2*s_}")
        for s_ in range(4):
            a(f"v_exp_f32 v{B+2*s_}, v{B+2*s_}")
        a("s_nop 0")
        a(f"v_mul_f32 v{Ls}, v{B}, v{B+1}")
        for s_ in range(1, 4):
            a(f"v_fma_f32 v{Ls}, v{B+2*s_}, v{B+2*s_+1}, v{Ls}")
        a(f"v_rcp_f32 v{Ls}, v{Ls}")
    a.wait_vm("y")
    for hh in range(2):
        B = ML + hh * 8
        Mx = 8 + hh * 2
        a(f"v_mul_f32 v{Mx}, v{B}, v{Y+hh*4}")
        for s_ in range(1, 4):
            a(f"v_fma_f32 v{Mx}, v{B+2*s_}, v{Y+hh*4+s_}, v{Mx}")
    a("v_mul_f32 v12, v8, v9")
    a("v_fma_f32 v12, v10, v11, v12")
    a.wait_vm("bp")
    for i in range(7):
        a(f"v_add_f32 v{BP+2*i}, v{BP+2*i}, v{BP+2*i+1}")
    a(f"v_add_f32 v{BP}, v{BP}, v{BP+2}")
    a(f"v_add_f32 v{BP+4}, v{BP+4}, v{BP+6}")
    a(f"v_add_f32 v{BP+8}, v{BP+8}, v{BP+10}")
    a(f"v_add_f32 v{BP}, v{BP}, v{BP+4}")
    a(f"v_add_f32 v{BP+8}, v{BP+8}, v{BP+12}")
    a(f"v_add_f32 v13, v{BP}, v{BP+8}")
    a.wait_vm("g")
    a("v_lshlrev_b32 v56, 16, v54")
    a("v_and_b32 v57, 0xffff0000, v54")
    a("v_lshlrev_b32 v58, 16, v55")
    a("v_and_b32 v59, 0xffff0000, v55")
    a("v_mul_f32 v56, v56, v58")
    a("v_mul_f32 v57, v57, v59")
    a("v_cvt_pk_bf16_f32 v56, v56, v57")
    a("v_lshlrev_b32 v57, 16, v56")
    a("v_and_b32 v56, 0xffff0000, v56")
    a("v_add_f32 v14, v56, v57")
    a("v_permlane32_swap_b32 v12, v13")
    a("v_add_f32 v12, v12, v13")
    a("v_mov_b32 v13, v12")
    a("v_mov_b32 v15, v14")
    a("s_nop 0")
    a("v_permlane16_swap_b32 v12, v13")
    a("v_permlane32_swap_b32 v14, v15")
    a("v_add_f32 v12, v12, v13")
    a("v_add_f32 v14, v14, v15")
    a("v_mov_b32 v15, v14")
    a("s_nop 1")
    a("v_permlane16_swap_b32 v14, v15")
    a("v_add_f32 v14, v14, v15")
    for rr in (8, 4, 2, 1):
        a("s_nop 1")
        a(f"v_add_f32_dpp v14, v14, v14 row_ror:{rr} row_mask:0xf bank_mask:0xf")
    a("v_and_b32 v4, 63, v0")
    a("v_lshrrev_b32 v5, 5, v4")
    a("v_lshlrev_b32 v5, 6, v5")
    a("v_lshl_add_u32 v5, v2, 2, v5")
    a("s_lshl_b32 s61, s3, 7")
    a("v_add_u32 v5, s61, v5")
    a("ds_write_b32 v5, v12")
    a("s_lshl_b32 s61, s3, 2")
    a("v_mov_b32 v6, s61")
    a("ds_write_b32 v6, v14 offset:512")
    a("s_waitcnt lgkmcnt(0)")
    a("s_barrier")
    a("s_cmp_lg_u32 s3, 0")
    a("s_cbranch_scc1 L2_done")
    a("v_lshlrev_b32 v5, 2, v2")
    for w in range(4):
        a(f"ds_read_b32 v{16+w}, v5 offset:{w*128}")
        a(f"ds_read_b32 v{20+w}, v5 offset:{w*128+64}")
    a("v_mov_b32 v6, 0")
    a("ds_read_b128 v[24:27], v6 offset:512")
    a("s_waitcnt lgkmcnt(0)")
    a("v_add_f32 v16, v16, v17"); a("v_add_f32 v18, v18, v19"); a("v_add_f32 v16, v16, v18")
    a("v_add_f32 v20, v20, v21"); a("v_add_f32 v22, v22, v23"); a("v_add_f32 v20, v20, v22")
    a("v_add_f32 v24, v24, v25"); a("v_add_f32 v26, v26, v27"); a("v_add_f32 v24, v24, v26")
    def rbf(r):
        a(f"v_cvt_pk_bf16_f32 v{r}, v{r}, v{r}")
        a(f"v_lshlrev_b32 v{r}, 16, v{r}")
    rbf(16); rbf(20); rbf(24)
    a(f"v_mul_f32 v24, 0x{f2u(-LOG2E):08x}, v24")
    a("v_exp_f32 v24, v24")
    a("s_nop 0")
    a("v_add_f32 v24, 1.0, v24")
    a("v_rcp_f32 v24, v24")
    a("s_nop 0")
    rbf(24)
    a("v_sub_f32 v25, 1.0, v24")
    rbf(25)
    a("v_mul_f32 v16, v24, v16"); rbf(16)
    a("v_mul_f32 v20, v25, v20"); rbf(20)
    a("v_add_f32 v16, v16, v20")
    a("v_cvt_pk_bf16_f32 v16, v16, v16")
    a("s_lshl_b32 s61, s2, 5")
    a("v_lshlrev_b32 v5, 1, v2")
    a("v_cmp_gt_u32 vcc, 16, v0")
    a("s_and_saveexec_b64 s[70:71], vcc")
    a("buffer_store_short v16, v5, s[36:39], s61 offen")
    STAMP(1)
    STAMP_STORE(2, ["s_lshl_b32 s61, s2, 4", "s_add_u32 s61, s61, 131072"], SWS, 40)
    if dbg:
        a("s_cmp_lg_u32 s2, 0")
        a("s_cbranch_scc1 L2_done")
        a("v_lshrrev_b32 v30, 2, v0")
        a("v_mul_u32_u24 v30, 85*512, v30")
        a("v_and_b32 v31, 3, v0")
        a("v_lshl_add_u32 v30, v31, 2, v30")
        a(f"s_mov_b32 s61, {WS_ST}")
        a(f"buffer_load_dword v32, v30, s[{SWS}:{SWS+3}], s61 offen")
        a("s_mov_b32 s28, s24"); a("s_mov_b32 s29, s25"); a("s_mov_b32 s30, 256"); a("s_mov_b32 s31, 0x00020000")
        a("v_lshlrev_b32 v33, 2, v0")
        a("s_waitcnt vmcnt(0)")
        a("v_cmp_eq_u32 vcc, 12, v0")
        a("v_mov_b32 v34, s90")
        a("s_nop 1")
        a("v_cndmask_b32 v32, v32, v34, vcc")
        a("v_cmp_eq_u32 vcc, 13, v0")
        a("v_mov_b32 v34, s92")
        a("s_nop 1")
        a("v_cndmask_b32 v32, v32, v34, vcc")
        a("buffer_store_dword v32, v33, s[28:31], 0 offen")
    a.label("L2_done")
    a("s_endpgm")

    a.raw('.section .rodata,"a"')
    def kd(name, nv):
        a.raw(".p2align 6")
        a.raw(f".amdhsa_kernel {name}")
        a.raw(f"  .amdhsa_next_free_vgpr {nv}")
        a.raw("  .amdhsa_next_free_sgpr 102")
        a.raw(f"  .amdhsa_accum_offset {(nv+3)//4*4}")
        a.raw("  .amdhsa_group_segment_fixed_size 0")
        a.raw("  .amdhsa_kernarg_size 96")
        a.raw("  .amdhsa_user_sgpr_count 2")
        a.raw("  .amdhsa_user_sgpr_kernarg_segment_ptr 1")
        a.raw("  .amdhsa_system_sgpr_workgroup_id_x 1")
        a.raw(".end_amdhsa_kernel")
    kd("attn_kernel", NV1)
    kd("fin_kernel", 64)
    return "\n".join(a.L) + "\n"

if __name__ == "__main__":
    import argparse
    ap = argparse.ArgumentParser()
    ap.add_argument("-o", default=f"cdna_kernels/{KN}.s")
    ap.add_argument("--pol_kv", default="nt")
    ap.add_argument("--pol_w", default="")
    ap.add_argument("--nb", type=int, default=4)
    ap.add_argument("--nt", type=int, default=4)
    ap.add_argument("--mimic", action="store_true")
    ap.add_argument("--stamp", action="store_true")
    ap.add_argument("--ypace", type=int, default=2)
    ap.add_argument("--wops", type=int, default=2)
    ap.add_argument("--kpat", default="mc")
    ap.add_argument("--kpeel", default="c")
    ap.add_argument("--dbg", action="store_true")
    args = ap.parse_args()
    open(args.o, "w").write(gen(pol_kv=args.pol_kv, pol_w=args.pol_w, NB=args.nb, NT=args.nt, mimic=args.mimic,
                                stamp=args.stamp, ypace=args.ypace, wo_per_step=args.wops, kpat=args.kpat, kpeel=args.kpeel, dbg=args.dbg))
```

```python
import sys, math, struct

KN = "gated_mix__mha_block_cached__dense_activation_silu__decode"

def f2u(x):
    return struct.unpack("<I", struct.pack("<f", x))[0]

class Asm:
    def __init__(self):
        self.L = []
        self.q = []
    def __call__(self, s):
        self.L.append("  " + s)
    def label(self, s):
        self.L.append(s + ":")
    def raw(self, s):
        self.L.append(s)
    def vm(self, s, tag):
        self.L.append("  " + s)
        self.q.append(tag)
    def wait_vm(self, *tags):
        last = -1
        for i, t in enumerate(self.q):
            if t in tags:
                last = i
        if last < 0:
            return
        n = len(self.q) - 1 - last
        assert n <= 63, n
        self.L.append(f"  s_waitcnt vmcnt({n})")
        self.q = self.q[last + 1:]

WS_Y = 0
WS_ML = 512 * 1024
WS_BP = 1024 * 1024
WS_ST = 4 * 1024 * 1024
WS_BYTES = 536870912

LOG2E = 1.4426950408889634
SCALE = 128 ** -0.5
OOB = 0x40000000

def gen(pol_kv="nt", pol_w="", NB=4, NT=4, mimic=False, stamp=False, ypace=2, wo_per_step=2, kpat="mc", kpeel="c", dbg=False, oprio=1, yprio=3, wq_chunk=8):
    a = Asm()
    D = NB - 1
    U = {2: 4, 3: 6, 4: 4}[NB]
    def STAMP(k):
        if stamp or dbg:
            a(f"s_memrealtime s[{90+2*k}:{91+2*k}]")
    def STAMP_STORE(n, base_expr_lines, srd, vtmp):
        if not (stamp or dbg): return
        a("s_waitcnt lgkmcnt(0)")
        for l in base_expr_lines: a(l)
        a(f"s_add_u32 s61, s61, {WS_ST}")
        for k in range(n):
            a(f"v_mov_b32 v{vtmp+1+k}, s{90+2*k}")
        a(f"v_mov_b32 v{vtmp}, 0")
        for k in range(n):
            a(f"buffer_store_dword v{vtmp+1+k}, v{vtmp}, s[{srd}:{srd+3}], s61 offen offset:{4*k}")

    hdr = open(f"cdna_kernels/{KN}.s.ref").read().split("; Override launch")[0]
    a.raw(hdr.rstrip())
    a.raw("; @launch kernel=attn_kernel grid=(256,1,1) block=(512,1,1) lds=147456")
    a.raw("; @launch kernel=fin_kernel grid=(64,1,1) block=(256,1,1) lds=1024")
    a.raw('.amdgcn_target "amdgcn-amd-amdhsa--gfx950"')
    a.raw(".text")

    a.raw(".globl attn_kernel")
    a.raw(".p2align 8")
    a.raw(".type attn_kernel,@function")
    a.label("attn_kernel")
    a("s_cmp_ge_u32 s2, 256")
    a("s_cbranch_scc1 L1_done")
    STAMP(0)
    a("s_load_dwordx16 s[4:19], s[0:1], 0")
    a("s_load_dwordx8 s[20:27], s[0:1], 64")
    a("v_lshrrev_b32 v1, 6, v0")
    a("v_and_b32 v0, 63, v0")
    a("s_nop 0")
    a("v_readfirstlane_b32 s3, v1")
    sSELLO, sSELHI, sC = 65, 66, 67
    a(f"s_mov_b32 s{sSELLO}, 0x05040100")
    a(f"s_mov_b32 s{sSELHI}, 0x07060302")
    if mimic:
        a(f"s_mov_b32 s{sC}, 0x{f2u(LOG2E):08x}")
        a(f"s_mov_b32 s68, 0x{f2u(SCALE):08x}")
    else:
        a(f"s_mov_b32 s{sC}, 0x{f2u(LOG2E * SCALE):08x}")
    a("s_and_b32 s60, s2, 7")
    a("s_lshr_b32 s61, s2, 3")
    a("s_and_b32 s62, s61, 3")
    a("s_lshl_b32 s62, s62, 3")
    a("s_add_u32 s62, s62, s60")
    a("s_lshr_b32 s61, s61, 2")
    a("s_lshr_b32 s63, s61, 2")
    a("s_and_b32 s64, s61, 3")

    vG, vCc, vKO, vVO = 1, 2, 3, 4
    vM, vL, vLD = 5, 6, 7
    vT = 8
    vQ = 24
    vO = 40
    vS = [48, 52]
    vQc = 52
    vR = 56
    vW = vR + 128
    vCA, vC1 = vW + 65, vW + 66
    NV1 = vW + 70
    assert NV1 <= 256 and NB <= 4 and NT <= 4
    def KB(buf): return vR + buf * 32
    def VB(buf): return vR + buf * 32 + 16

    L_QP, L_QB, L_OP, L_ML, L_CNT, L_P = 0, 2048, 4096, 8192, 8328, 8448
    L_W = 16384

    a(f"v_mov_b32 v{vCA}, 0")
    a(f"v_mov_b32 v{vC1}, 1")
    a(f"v_lshrrev_b32 v{vG}, 4, v0")
    a(f"v_and_b32 v{vCc}, 15, v0")
    a(f"v_lshlrev_b32 v{vKO}, 8, v{vCc}")
    a(f"v_lshl_add_u32 v{vKO}, v{vG}, 4, v{vKO}")
    a(f"v_lshlrev_b32 v{vVO}, 4, v{vCc}")
    a(f"v_lshl_add_u32 v{vVO}, v{vG}, 10, v{vVO}")
    a(f"v_and_b32 v{vT}, 1, v{vG}")
    a(f"v_lshrrev_b32 v{vT+1}, 1, v{vG}")
    a(f"v_lshlrev_b32 v{vLD}, 5, v{vCc}")
    a(f"v_lshl_add_u32 v{vLD}, v{vT}, 3, v{vLD}")
    a(f"v_lshl_add_u32 v{vLD}, v{vT+1}, 4, v{vLD}")
    a("s_lshl_b32 s61, s3, 9")
    a(f"v_add_u32 v{vLD}, s61, v{vLD}")
    a("s_lshl_b32 s60, s63, 5")
    a("s_add_u32 s60, s60, s62")
    a("s_lshl_b32 s60, s60, 21")
    a("s_lshl_b32 s61, s64, 19")
    a("s_add_u32 s60, s60, s61")
    a("s_lshl_b32 s71, s3, 14")
    a(f"s_add_u32 s71, s71, {L_W}")
    sFF, sB0 = 88, 89
    a("s_lshr_b32 s61, s2, 3")
    a("s_cmp_lt_u32 s61, 28")
    a(f"s_cselect_b32 s{sFF}, 1, 0")
    a(f"s_sub_u32 s{sB0}, {4*NT}, s{sFF}")
    sOFF = 72
    sWP, sTMP = 86, 87
    a(f"s_mov_b32 s{sWP}, 0")
    a("s_mov_b32 s84, 0")
    a("s_mov_b32 s82, 0")
    a("s_waitcnt lgkmcnt(0)")
    def srd(d, p, size):
        a(f"s_mov_b32 s{d}, s{p}")
        a(f"s_mov_b32 s{d+1}, s{p+1}")
        a(f"s_mov_b32 s{d+2}, 0x{size:x}")
        a(f"s_mov_b32 s{d+3}, 0x00020000")
    SX, SWQ, SK, SV, SWO, SWS, SW1, SW2 = 28, 32, 36, 40, 44, 48, 52, 56
    srd(SX, 4, 2048)
    srd(SWQ, 10, 512 * 4096 * 2)
    srd(SK, 6, 128 << 20)
    srd(SV, 8, 128 << 20)
    srd(SWO, 12, 4096 * 512 * 2)
    srd(SWS, 26, WS_BYTES)
    srd(SW1, 16, 512 * 1792 * 2)
    srd(SW2, 18, 1792 * 512 * 2)

    def issue_K(seq, buf, pat="c"):
        for j in range(4):
            r = KB(buf) + 4 * j
            if pat == "c":
                a.vm(f"buffer_load_dwordx4 v[{r}:{r+3}], v{vVO}, s[{SK}:{SK+3}], s{sOFF + seq % U} offen offset:{j*256} {pol_kv}", f"K{seq}")
            else:
                a.vm(f"buffer_load_dwordx4 v[{r}:{r+3}], v{vKO}, s[{SK}:{SK+3}], s{sOFF + seq % U} offen offset:{j*64} {pol_kv}", f"K{seq}")
    def issue_V(seq, buf):
        for r_ in range(4):
            r = VB(buf) + 4 * r_
            a.vm(f"buffer_load_dwordx4 v[{r}:{r+3}], v{vVO}, s[{SV}:{SV+3}], s{sOFF + seq % U} offen offset:{r_*256} {pol_kv}", f"V{seq}")

    vGR = vT + 15
    def grab_issue():
        a("s_mov_b64 exec, 1")
        a(f"ds_add_rtn_u32 v{vGR}, v{vCA}, v{vC1} offset:{L_CNT}")
        a("s_mov_b64 exec, -1")
    L_LOG = 12544
    vLG = NV1 - 1
    def grab_resolve(seq):
        a("s_waitcnt lgkmcnt(0)")
        a(f"v_readfirstlane_b32 s61, v{vGR}")
        if stamp:
            a(f"v_mov_b32 v{vT+12}, s61")
            a(f"v_mov_b32 v{vT+13}, s100")
            a(f"ds_write_b64 v{vLG}, v[{vT+12}:{vT+13}] offset:{L_LOG}")
            a(f"v_add_u32 v{vLG}, 8, v{vLG}")
            a("s_memrealtime s[100:101]")
        a(f"s_lshl_b32 s{sTMP}, s61, 12")
        a(f"s_add_u32 s{sTMP}, s{sTMP}, s60")
        a("s_cmp_lt_u32 s61, 128")
        a(f"s_cselect_b32 s{sOFF + seq % U}, s{sTMP}, 0x{OOB:x}")

    def reduce_scatter8(regs):
        a("s_nop 2")
        for i in range(4):
            a(f"v_permlane32_swap_b32 v{regs[i]}, v{regs[i+4]}")
        for i in range(4):
            a(f"v_add_f32 v{regs[i]}, v{regs[i]}, v{regs[i+4]}")
        a("s_nop 1")
        for i in range(2):
            a(f"v_permlane16_swap_b32 v{regs[i]}, v{regs[i+2]}")
        for i in range(2):
            a(f"v_add_f32 v{regs[i]}, v{regs[i]}, v{regs[i+2]}")

    def qfrag():
        a(f"v_lshlrev_b32 v{vT}, 3, v0")
        for w in range(4):
            a(f"ds_read_b64 v[{vQ+2*w}:{vQ+2*w+1}], v{vT} offset:{L_QP + w*512}")
        a("s_lshl_b32 s61, s3, 8")
        a(f"v_lshlrev_b32 v{vT+1}, 2, v0")
        a(f"v_add_u32 v{vT+1}, s61, v{vT+1}")
        a(f"v_lshlrev_b32 v{vT+2}, 4, v{vCc}")
        a(f"v_add_u32 v{vT+2}, s61, v{vT+2}")
        a(f"v_lshlrev_b32 v{vT+4}, 4, v{vG}")
        a(f"v_add_u32 v{vT+4}, s61, v{vT+4}")
        a("s_waitcnt lgkmcnt(0)")
        for (x, y) in ((0, 1), (2, 3), (0, 2)):
            a(f"v_add_f32 v{vQ+2*x}, v{vQ+2*x}, v{vQ+2*y}")
            a(f"v_add_f32 v{vQ+2*x+1}, v{vQ+2*x+1}, v{vQ+2*y+1}")
        a(f"v_cvt_pk_bf16_f32 v{vT+3}, v{vQ}, v{vQ+1}")
        a(f"ds_write_b32 v{vT+1}, v{vT+3} offset:{L_QB}")
        a("s_waitcnt lgkmcnt(0)")
        a(f"ds_read_b128 v[{vQc}:{vQc+3}], v{vT+2} offset:{L_QB}")
        for j in range(4):
            a(f"ds_read_b128 v[{vQ+4*j}:{vQ+4*j+3}], v{vT+4} offset:{L_QB + j*64}")
        a(f"v_mov_b32 v{vM}, 0x{f2u(-3.0e38):08x}")
        a(f"v_mov_b32 v{vL}, 0")
        for i in range(8):
            a(f"v_mov_b32 v{vO+i}, 0")
        a("s_waitcnt lgkmcnt(0)")

    def qk(kreg, S, pat="c"):
        if pat == "m":
            for j in range(4):
                c = "0" if j == 0 else f"v[{S}:{S+3}]"
                a(f"v_mfma_f32_16x16x32_bf16 v[{S}:{S+3}], v[{kreg+4*j}:{kreg+4*j+3}], v[{vQ+4*j}:{vQ+4*j+3}], {c}")
            a("s_nop 7")
            return
        for d in range(4):
            for r in range(4):
                c = "0" if d == 0 else f"v{S+r}"
                a(f"v_dot2_f32_bf16 v{S+r}, v{kreg+4*r+d}, v{vQc+d}, {c}")
        a("s_nop 0")
        for rr in (8, 4, 2, 1):
            for r in range(4):
                a(f"v_add_f32_dpp v{S+r}, v{S+r}, v{S+r} row_ror:{rr} row_mask:0xf bank_mask:0xf")

    mN, al, mc, ps, t1, t2, P01, P23 = vT, vT + 1, vT + 2, vT + 4, vT + 8, vT + 9, vT + 10, vT + 11
    pt = [vT + 12, vT + 13, vT + 14, vT + 3]
    def softmax_pv(S, vreg):
        if mimic:
            for h2 in range(2):
                a(f"v_cvt_pk_bf16_f32 v{t1}, v{S+2*h2}, v{S+2*h2+1}")
                a(f"v_lshlrev_b32 v{S+2*h2}, 16, v{t1}")
                a(f"v_and_b32 v{S+2*h2+1}, 0xffff0000, v{t1}")
                a(f"v_mul_f32 v{S+2*h2}, s68, v{S+2*h2}")
                a(f"v_mul_f32 v{S+2*h2+1}, s68, v{S+2*h2+1}")
                a(f"v_cvt_pk_bf16_f32 v{t1}, v{S+2*h2}, v{S+2*h2+1}")
                a(f"v_lshlrev_b32 v{S+2*h2}, 16, v{t1}")
                a(f"v_and_b32 v{S+2*h2+1}, 0xffff0000, v{t1}")
        a(f"v_max3_f32 v{mN}, v{S}, v{S+1}, v{vM}")
        a(f"v_max3_f32 v{mN}, v{S+2}, v{S+3}, v{mN}")
        a(f"v_sub_f32 v{al}, v{vM}, v{mN}")
        a(f"v_mul_f32 v{mc}, s{sC}, v{mN}")
        a(f"v_mul_f32 v{al}, s{sC}, v{al}")
        for i in range(4):
            a(f"v_fma_f32 v{ps+i}, v{S+i}, s{sC}, -v{mc}")
        a(f"v_exp_f32 v{al}, v{al}")
        for i in range(4):
            a(f"v_exp_f32 v{ps+i}, v{ps+i}")
        a(f"v_mov_b32 v{vM}, v{mN}")
        for i in range(8):
            a(f"v_mul_f32 v{vO+i}, v{al}, v{vO+i}")
        a(f"v_cvt_pk_bf16_f32 v{P01}, v{ps}, v{ps+1}")
        a(f"v_cvt_pk_bf16_f32 v{P23}, v{ps+2}, v{ps+3}")
        a(f"v_add_f32 v{t1}, v{ps}, v{ps+1}")
        a(f"v_add_f32 v{t2}, v{ps+2}, v{ps+3}")
        a(f"v_add_f32 v{t1}, v{t1}, v{t2}")
        a(f"v_fma_f32 v{vL}, v{vL}, v{al}, v{t1}")
        for pr, P in ((0, P01), (2, P23)):
            r0, r1 = vreg + 4 * pr, vreg + 4 * (pr + 1)
            for d in range(4):
                tl, th = pt[2 * (d & 1)], pt[2 * (d & 1) + 1]
                a(f"v_perm_b32 v{tl}, v{r1+d}, v{r0+d}, s{sSELLO}")
                a(f"v_perm_b32 v{th}, v{r1+d}, v{r0+d}, s{sSELHI}")
                a(f"v_dot2_f32_bf16 v{vO+2*d}, v{tl}, v{P}, v{vO+2*d}")
                a(f"v_dot2_f32_bf16 v{vO+2*d+1}, v{th}, v{P}, v{vO+2*d+1}")

    vWA = vW + 67
    def wo_setup():
        a(f"v_lshrrev_b32 v{vWA}, 3, v0")
        a(f"v_lshlrev_b32 v{vWA}, 10, v{vWA}")
        a(f"v_and_b32 v{vT+12}, 7, v0")
        a(f"v_lshl_add_u32 v{vWA}, v{vT+12}, 4, v{vWA}")
        a("s_lshl_b32 s83, s62, 17")
        a("s_lshl_b32 s61, s3, 7")
        a("s_add_u32 s83, s83, s61")
    def wo_piece(n, track):
        sl, i = n >> 4, n & 15
        a(f"s_add_u32 m0, s71, {sl*65536 + i*1024}")
        a(f"s_add_u32 s61, s83, {sl*512 + i*8192}")
        ins = f"buffer_load_dwordx4 v{vWA}, s[{SWO}:{SWO+3}], s61 offen lds {pol_w}"
        if track: a.vm(ins, "wo")
        else: a(ins)
    def wo_flag_set():
        a("s_lshl_b32 s61, s3, 2")
        a(f"v_mov_b32 v{vT+12}, s61")
        a(f"ds_write_b32 v{vT+12}, v{vC1} offset:{L_CNT+8}")
    def wo_flag_wait():
        n = npoll[0]; npoll[0] += 1
        a("s_sub_u32 s61, s3, 4")
        a("s_lshl_b32 s61, s61, 2")
        a(f"v_mov_b32 v{vT+1}, s61")
        a.label(f"L1_poll{n}")
        a(f"ds_read_b32 v{vT}, v{vT+1} offset:{L_CNT+8}")
        a("s_waitcnt lgkmcnt(0)")
        a(f"v_readfirstlane_b32 s61, v{vT}")
        a("s_cmp_eq_u32 s61, 1")
        a(f"s_cbranch_scc1 L1_polled{n}")
        a("s_sleep 8")
        a(f"s_branch L1_poll{n}")
        a.label(f"L1_polled{n}")
    npoll = [0]

    Wlo = [None] * 32; Whi = [None] * 32
    def wperm():
        a(f"v_and_b32 v{vT+12}, 31, v0")
        a(f"v_lshrrev_b32 v{vT+13}, 5, v0")
        a(f"v_lshlrev_b32 v{vT+13}, 13, v{vT+13}")
        a(f"v_lshl_add_u32 v{vT+13}, v{vT+12}, 2, v{vT+13}")
        a(f"v_add_u32 v{vT+13}, s71, v{vT+13}")
        free = vW + 64
        for r in range(64):
            a(f"ds_read_b32 v{vW+r}, v{vT+13} offset:{r*128}")
        a("s_waitcnt lgkmcnt(0)")
        for p in range(32):
            r0, r1 = vW + 2 * p, vW + 2 * p + 1
            a(f"v_perm_b32 v{free}, v{r1}, v{r0}, s{sSELLO}")
            a(f"v_perm_b32 v{r1}, v{r1}, v{r0}, s{sSELHI}")
            Wlo[p] = free; Whi[p] = r1
            free = r0
        a(f"s_mov_b32 s{sWP}, 1")

    def young_tiles_issue(n):
        for i in range(n):
            if ypace and i >= ypace:
                a.wait_vm(f"V{i-ypace}")
            issue_K(i, i)
            issue_V(i, i)
    def young_tiles_process(n):
        for i in range(n):
            a.wait_vm(f"K{i}")
            qk(KB(i), vS[0])
            a.wait_vm(f"V{i}")
            softmax_pv(vS[0], VB(i))

    a(f"s_add_u32 s61, s{sB0}, {4*D}")
    a(f"v_mov_b32 v{vT+6}, s61")
    for i in range(7, 12):
        a(f"v_mov_b32 v{vT+i}, 0")
    a(f"ds_write_b64 v{vCA}, v[{vT+6}:{vT+7}] offset:{L_CNT}")
    a(f"ds_write_b128 v{vCA}, v[{vT+8}:{vT+11}] offset:{L_CNT+8}")
    a("s_waitcnt lgkmcnt(0)")
    a("s_barrier")
    def q_wait():
        n = npoll[0]; npoll[0] += 1
        a.label(f"L1_poll{n}")
        a(f"ds_read_b32 v{vT}, v{vCA} offset:{L_CNT+4}")
        a("s_waitcnt lgkmcnt(0)")
        a(f"v_readfirstlane_b32 s61, v{vT}")
        a("s_cmp_ge_u32 s61, 4")
        a(f"s_cbranch_scc1 L1_polled{n}")
        a("s_sleep 1")
        a(f"s_branch L1_poll{n}")
        a.label(f"L1_polled{n}")
    a("s_cmp_lt_u32 s3, 4")
    a("s_cbranch_scc1 L1_pathA")
    a(f"s_setprio {yprio}")
    a("s_add_u32 s61, s3, 3")
    a("s_and_b32 s61, s61, 3")
    a(f"s_mul_i32 s61, s61, {NT*4096}")
    a(f"s_add_u32 s{sOFF}, s60, s61")
    for k in range(1, NT):
        a(f"s_add_u32 s{sOFF+k}, s{sOFF}, {k*4096}")
    a("s_cmp_eq_u32 s3, 4")
    a("s_cbranch_scc0 L1_pathB")
    a(f"s_cmp_eq_u32 s{sFF}, 1")
    a("s_cbranch_scc0 L1_pathB")

    a.q = []
    fB = vR + (NT - 1) * 32
    fW1, fW2, fX, fA, fT = fB, fB + 32, fB + 64, fB + 72, fB + 88
    assert fT + 4 <= vCA
    a("s_lshr_b32 s61, s2, 3")
    a("s_and_b32 s69, s2, 7")
    a("s_mul_i32 s69, s69, 28")
    a("s_add_u32 s85, s69, s61")
    a("s_mov_b32 s61, 28672")
    a(f"v_mul_lo_u32 v{vT}, v0, s61")
    a(f"v_lshlrev_b32 v{vT+1}, 4, v0")
    for b in range(2):
        a.vm(f"buffer_load_dwordx4 v[{fX+4*b}:{fX+4*b+3}], v{vT+1}, s[{SX}:{SX+3}], 0 offen offset:{b*1024}", "f")
    a("s_lshl_b32 s70, s85, 4")
    for i in range(8):
        if i & 1 == 0:
            a(f"s_add_u32 s61, s70, {i*3584}")
        a.vm(f"buffer_load_dwordx4 v[{fW1+4*i}:{fW1+4*i+3}], v{vT}, s[{SW1}:{SW1+3}], s61 offen offset:{(i&1)*3584} {pol_w}", "f")
    a("s_lshl_b32 s70, s85, 13")
    for j in range(8):
        if j & 3 == 0:
            a(f"s_add_u32 s61, s70, {j*1024}")
        a.vm(f"buffer_load_dwordx4 v[{fW2+4*j}:{fW2+4*j+3}], v{vT+1}, s[{SW2}:{SW2+3}], s61 offen offset:{(j&3)*1024} {pol_w}", "f")
    young_tiles_issue(NT - 1)
    q_wait()
    qfrag()
    STAMP(1)
    young_tiles_process(NT - 1)
    for i in range(16):
        a(f"v_mov_b32 v{fA+i}, 0")
    def f_compute(W, xs):
        for p in range(4):
            r0, r1 = W + 8 * p, W + 8 * p + 4
            for d in range(4):
                tl, th = fT + 2 * (d & 1), fT + 1 + 2 * (d & 1)
                a(f"v_perm_b32 v{tl}, v{r1+d}, v{r0+d}, s{sSELLO}")
                a(f"v_perm_b32 v{th}, v{r1+d}, v{r0+d}, s{sSELHI}")
                for b in range(2):
                    a(f"v_dot2_f32_bf16 v{fA+b*8+2*d}, v{tl}, {xs(b,p)}, v{fA+b*8+2*d}")
                    a(f"v_dot2_f32_bf16 v{fA+b*8+2*d+1}, v{th}, {xs(b,p)}, v{fA+b*8+2*d+1}")
    f_compute(fW1, lambda b, p: f"v{fX+4*b+p}")
    a("s_nop 2")
    for i in range(8):
        a(f"v_permlane32_swap_b32 v{fA+i}, v{fA+i+8}")
    for i in range(8):
        a(f"v_add_f32 v{fA+i}, v{fA+i}, v{fA+i+8}")
    a("s_nop 1")
    for i in range(4):
        a(f"v_permlane16_swap_b32 v{fA+i}, v{fA+i+4}")
    for i in range(4):
        a(f"v_add_f32 v{fA+i}, v{fA+i}, v{fA+i+4}")
    for rr in (8, 4, 2, 1):
        a("s_nop 1")
        for i in range(4):
            a(f"v_add_f32_dpp v{fA+i}, v{fA+i}, v{fA+i} row_ror:{rr} row_mask:0xf bank_mask:0xf")
    for i in range(4):
        a(f"v_cvt_pk_bf16_f32 v{fA+i}, v{fA+i}, v{fA+i}")
    for i in range(4):
        a(f"v_lshlrev_b32 v{fA+i}, 16, v{fA+i}")
    for i in range(4):
        a(f"v_mul_f32 v{fA+4+i}, 0x{f2u(-LOG2E):08x}, v{fA+i}")
    for i in range(4):
        a(f"v_exp_f32 v{fA+4+i}, v{fA+4+i}")
    a("s_nop 0")
    for i in range(4):
        a(f"v_add_f32 v{fA+4+i}, 1.0, v{fA+4+i}")
    for i in range(4):
        a(f"v_rcp_f32 v{fA+4+i}, v{fA+4+i}")
    a("s_nop 0")
    for i in range(4):
        a(f"v_mul_f32 v{fA+i}, v{fA+i}, v{fA+4+i}")
    a(f"v_cvt_pk_bf16_f32 v{fA+8}, v{fA}, v{fA+1}")
    a(f"v_cvt_pk_bf16_f32 v{fA+9}, v{fA+2}, v{fA+3}")
    a("s_nop 0")
    sH = 72
    for g in range(4):
        for k in range(2):
            a(f"v_readlane_b32 s{sH + (g>>1)*4 + (g&1)*2 + k}, v{fA+8+k}, {16*g}")
    for i in range(16):
        a(f"v_mov_b32 v{fA+i}, 0")
    f_compute(fW2, lambda b, p: f"s{sH+4*b+p}")
    fK = vR + 64
    a("s_nop 2")
    for i in range(16):
        a(f"v_mov_b32 v{fK+i}, v{fA+i}")
    a(f"v_lshrrev_b32 v{fK+16}, 1, v0")
    a(f"v_lshlrev_b32 v{fK+16}, 14, v{fK+16}")
    a(f"v_and_b32 v{fK+17}, 1, v0")
    a(f"v_lshl_add_u32 v{fK+16}, v{fK+17}, 5, v{fK+16}")
    a("s_mov_b32 s84, 1")
    a("s_branch L1_yexit")

    a.q = []
    a.label("L1_pathB")
    young_tiles_issue(NT)
    q_wait()
    qfrag()
    STAMP(1)
    young_tiles_process(NT)
    a.label("L1_yexit")
    STAMP(2)
    wo_flag_wait()
    wperm()
    a("s_branch L1_comb")

    a.q = []
    a.label("L1_pathA")
    a(f"s_setprio {oprio}")
    vX = vW
    a(f"v_lshlrev_b32 v{vT}, 6, v{vG}")
    a("s_lshl_b32 s61, s63, 10")
    a("s_lshl_b32 s69, s3, 8")
    a("s_add_u32 s61, s61, s69")
    for k in range(4):
        a.vm(f"buffer_load_dwordx4 v[{vX+4*k}:{vX+4*k+3}], v{vT}, s[{SX}:{SX+3}], s61 offen offset:{16*k}", "x")
    a(f"v_lshlrev_b32 v{vT+1}, 4, v{vCc}")
    a(f"v_lshl_add_u32 v{vT+1}, v{vG}, 18, v{vT+1}")
    a(f"s_add_u32 s61, s{sB0}, s3")
    a("s_lshl_b32 s61, s61, 12")
    a(f"s_add_u32 s{sOFF}, s60, s61")
    for k in range(1, D):
        a(f"s_add_u32 s{sOFF+k}, s{sOFF}, {k*4*4096}")
    a("s_lshl_b32 s83, s3, 20")
    a("s_lshl_b32 s69, s62, 8")
    a("s_add_u32 s83, s83, s69")
    a("s_lshl_b32 s70, s3, 15")
    a(f"s_add_u32 s70, s70, {L_W}")
    ntile = 0
    for i in range(32):
        a(f"s_add_u32 m0, s70, {i*1024}")
        a(f"s_add_u32 s61, s83, {i*8192}")
        a.vm(f"buffer_load_dwordx4 v{vT+1}, s[{SWQ}:{SWQ+3}], s61 offen lds", f"wq{i}")
        if (i + 1) % wq_chunk == 0 and ntile < D and i < 31:
            issue_K(ntile, ntile); issue_V(ntile, ntile); ntile += 1
    pre_done = ntile
    acc = [vS[0] + i for i in range(4)] + [vS[1] + i for i in range(4)]
    for i in range(8):
        a(f"v_mov_b32 v{acc[i]}, 0")
    vWL = vT + 6
    a(f"v_lshlrev_b32 v{vWL}, 4, v0")
    a(f"v_add_u32 v{vWL}, s70, v{vWL}")
    def wqr(p): return vW + 16 + 8 * (p & 3)
    saved_q = None
    def wq_read(p):
        a.wait_vm("x", f"wq{2*p+1}")
        r = wqr(p)
        a(f"ds_read_b128 v[{r}:{r+3}], v{vWL} offset:{2*p*1024}")
        a(f"ds_read_b128 v[{r+4}:{r+7}], v{vWL} offset:{(2*p+1)*1024}")
    for p in range(3):
        wq_read(p)
    for p in range(16):
        rem = min(16 - 1 - p, 2)
        a(f"s_waitcnt lgkmcnt({2*rem})")
        r0 = wqr(p); r1 = r0 + 4
        for d in range(4):
            tl, th = vT + 2 + 2 * (d & 1), vT + 3 + 2 * (d & 1)
            a(f"v_perm_b32 v{tl}, v{r1+d}, v{r0+d}, s{sSELLO}")
            a(f"v_perm_b32 v{th}, v{r1+d}, v{r0+d}, s{sSELHI}")
            a(f"v_dot2_f32_bf16 v{acc[2*d]}, v{tl}, v{vX+p}, v{acc[2*d]}")
            a(f"v_dot2_f32_bf16 v{acc[2*d+1]}, v{th}, v{vX+p}, v{acc[2*d+1]}")
        if p + 3 < 16:
            wq_read(p + 3)
    reduce_scatter8(acc)
    a(f"ds_write_b64 v{vLD}, v[{acc[0]}:{acc[1]}] offset:{L_QP}")
    a("s_waitcnt lgkmcnt(0)")
    a("s_mov_b64 exec, 1")
    a(f"ds_add_u32 v{vCA}, v{vC1} offset:{L_CNT+4}")
    a("s_mov_b64 exec, -1")
    a.q = []
    q_wait()
    qfrag()
    a("s_setprio 0")
    STAMP(1)
    if stamp:
        a("s_lshl_b32 s61, s3, 9")
        a(f"v_mov_b32 v{vLG}, s61")
        a("s_memrealtime s[100:101]")
    grab_issue()
    for t in range(pre_done, D):
        issue_K(t, t)
        issue_V(t, t)
    wo_setup()
    npeel = -(-32 // (U * wo_per_step))
    def patof(seq):
        if seq < npeel * U: return kpeel[seq % len(kpeel)]
        return kpat[(seq % U) % len(kpat)]
    assert U % len(kpat) == 0
    piece = 0
    for ps_ in range(npeel):
        for k in range(U):
            seq = ps_ * U + k
            grab_resolve(k + D)
            grab_issue()
            issue_K(seq + D, (k + D) % NB, patof(seq + D))
            issue_V(seq + D, (k + D) % NB)
            for _ in range(wo_per_step):
                if piece < 32:
                    wo_piece(piece, True); piece += 1
            buf = k % NB
            a.wait_vm(f"K{seq}")
            qk(KB(buf), vS[0], patof(seq) if seq >= D else "c")
            a.wait_vm(f"V{seq}")
            softmax_pv(vS[0], VB(buf))
            a(f"s_cmp_eq_u32 s{sOFF + (k+1) % U}, 0x{OOB:x}")
            a("s_cbranch_scc1 L1_exit")
    a("s_mov_b32 s82, 1")
    a.label("L1_body")
    for k in range(U):
        grab_resolve(k + D)
        grab_issue()
        issue_K(k + D, (k + D) % NB, patof(npeel * U + k + D))
        issue_V(k + D, (k + D) % NB)
        buf = k % NB
        a(f"s_waitcnt vmcnt({8*D+4})")
        qk(KB(buf), vS[0], patof(npeel * U + k))
        a(f"s_waitcnt vmcnt({8*D})")
        softmax_pv(vS[0], VB(buf))
        a(f"s_cmp_eq_u32 s{sOFF + (k+1) % U}, 0x{OOB:x}")
        a("s_cbranch_scc1 L1_exit")
    a(f"s_cmp_eq_u32 s{sWP}, 1")
    a("s_cbranch_scc1 L1_body")
    a("s_waitcnt lgkmcnt(0)")
    wo_flag_set()
    wperm()
    a("s_branch L1_body")
    a.label("L1_exit")
    STAMP(2)
    a(f"s_cmp_eq_u32 s{sWP}, 1")
    a("s_cbranch_scc1 L1_comb")
    a("s_cmp_eq_u32 s82, 1")
    a("s_cbranch_scc1 L1_wo_issued")
    for n in range(32):
        wo_piece(n, False)
    a.label("L1_wo_issued")
    a("s_waitcnt vmcnt(0) lgkmcnt(0)")
    wo_flag_set()
    wperm()
    a.label("L1_comb")

    x1, x2, MW, f = vT, vT + 1, vT + 2, vT + 3
    a(f"v_mov_b32 v{x1}, v{vM}")
    a(f"v_mov_b32 v{x2}, v{vM}")
    a("s_nop 1")
    a(f"v_permlane32_swap_b32 v{x1}, v{x2}")
    a(f"v_max_f32 v{x1}, v{x1}, v{x2}")
    a(f"v_mov_b32 v{x2}, v{x1}")
    a("s_nop 1")
    a(f"v_permlane16_swap_b32 v{x1}, v{x2}")
    a(f"v_max_f32 v{MW}, v{x1}, v{x2}")
    a(f"v_sub_f32 v{f}, v{vM}, v{MW}")
    a(f"v_mul_f32 v{f}, s{sC}, v{f}")
    a(f"v_exp_f32 v{f}, v{f}")
    a("s_nop 0")
    a(f"v_mul_f32 v{x1}, v{f}, v{vL}")
    a(f"v_mul_f32 v{x2}, v{f}, v{vL}")
    for i in range(8):
        a(f"v_mul_f32 v{vO+i}, v{f}, v{vO+i}")
    a(f"v_permlane32_swap_b32 v{x1}, v{x2}")
    a(f"v_add_f32 v{x1}, v{x1}, v{x2}")
    a(f"v_mov_b32 v{x2}, v{x1}")
    a("s_nop 1")
    a(f"v_permlane16_swap_b32 v{x1}, v{x2}")
    a(f"v_add_f32 v{MW+1}, v{x1}, v{x2}")
    reduce_scatter8([vO + i for i in range(8)])
    a(f"ds_write_b64 v{vLD}, v[{vO}:{vO+1}] offset:{L_OP}")
    a("s_lshl_b32 s61, s3, 3")
    a(f"v_mov_b32 v{x1}, s61")
    a(f"ds_write_b64 v{x1}, v[{MW}:{MW+1}] offset:{L_ML}")
    aOP, aPW, aPR, aY = vM, vL, vS[0], vKO
    a(f"v_lshlrev_b32 v{aOP}, 3, v0")
    a("s_lshl_b32 s61, s3, 9")
    a(f"s_add_u32 s61, s61, {L_P}")
    a(f"v_lshlrev_b32 v{aPW}, 2, v0")
    a(f"v_add_u32 v{aPW}, s61, v{aPW}")
    a(f"v_lshrrev_b32 v{aPR}, 5, v0")
    a(f"v_lshlrev_b32 v{aPR}, 7, v{aPR}")
    a(f"v_add_u32 v{aPR}, s61, v{aPR}")
    a(f"v_and_b32 v{x2}, 31, v0")
    a(f"v_lshrrev_b32 v{vT+4}, 3, v{x2}")
    a(f"v_lshlrev_b32 v{aY}, 13, v{vT+4}")
    a(f"v_and_b32 v{x2}, 7, v{x2}")
    a(f"v_lshl_add_u32 v{aY}, v{x2}, 3, v{aY}")
    a(f"v_lshrrev_b32 v{x2}, 5, v0")
    a(f"v_lshl_add_u32 v{aY}, v{x2}, 2, v{aY}")
    a("s_lshl_b32 s61, s63, 5")
    a("s_lshl_b32 s69, s3, 2")
    a("s_add_u32 s61, s61, s69")
    a("s_lshl_b32 s61, s61, 13")
    a("s_lshl_b32 s69, s62, 2")
    a("s_add_u32 s69, s69, s64")
    a("s_lshl_b32 s70, s69, 6")
    a("s_add_u32 s60, s61, s70")
    a("s_waitcnt vmcnt(0) lgkmcnt(0)")
    a("s_barrier")
    STAMP(4)
    a(f"v_mov_b32 v{x1}, 0")
    for i in range(4):
        a(f"ds_read_b128 v[{vQ+4*i}:{vQ+4*i+3}], v{x1} offset:{L_ML + 16*i}")
    op = [vR + 2 * w for w in range(8)]
    for w in range(8):
        a(f"ds_read_b64 v[{op[w]}:{op[w]+1}], v{aOP} offset:{L_OP + w*512}")
    a("s_waitcnt lgkmcnt(8)")
    Mt, Lt = vT + 4, vT + 5
    a(f"v_max3_f32 v{Mt}, v{vQ}, v{vQ+2}, v{vQ+4}")
    a(f"v_max3_f32 v{Mt}, v{vQ+6}, v{vQ+8}, v{Mt}")
    a(f"v_max3_f32 v{Mt}, v{vQ+10}, v{vQ+12}, v{Mt}")
    a(f"v_max_f32 v{Mt}, v{vQ+14}, v{Mt}")
    for w in range(8):
        a(f"v_sub_f32 v{vQ+2*w}, v{vQ+2*w}, v{Mt}")
    for w in range(8):
        a(f"v_mul_f32 v{vQ+2*w}, s{sC}, v{vQ+2*w}")
    for w in range(8):
        a(f"v_exp_f32 v{vQ+2*w}, v{vQ+2*w}")
    a("s_waitcnt lgkmcnt(0)")
    o0, o1, hi, lo = vT + 6, vT + 7, vT + 8, vT + 9
    a(f"v_mul_f32 v{o0}, v{vQ}, v{op[0]}")
    a(f"v_mul_f32 v{o1}, v{vQ}, v{op[0]+1}")
    for w in range(1, 8):
        a(f"v_fma_f32 v{o0}, v{vQ+2*w}, v{op[w]}, v{o0}")
        a(f"v_fma_f32 v{o1}, v{vQ+2*w}, v{op[w]+1}, v{o1}")
    a(f"v_cvt_pk_bf16_f32 v{hi}, v{o0}, v{o1}")
    a(f"v_lshlrev_b32 v{x1}, 16, v{hi}")
    a(f"v_and_b32 v{x2}, 0xffff0000, v{hi}")
    a(f"v_sub_f32 v{o0}, v{o0}, v{x1}")
    a(f"v_sub_f32 v{o1}, v{o1}, v{x2}")
    a(f"v_cvt_pk_bf16_f32 v{lo}, v{o0}, v{o1}")
    a(f"ds_write_b32 v{aPW}, v{hi}")
    a(f"ds_write_b32 v{aPW}, v{lo} offset:256")
    a(f"v_mul_f32 v{Lt}, v{vQ}, v{vQ+1}")
    for w in range(1, 8):
        a(f"v_fma_f32 v{Lt}, v{vQ+2*w}, v{vQ+2*w+1}, v{Lt}")
    a("s_waitcnt lgkmcnt(0)")
    OH, OL = vR, vR + 32
    for k in range(8):
        a(f"ds_read_b128 v[{OH+4*k}:{OH+4*k+3}], v{aPR} offset:{16*k}")
    for k in range(8):
        a(f"ds_read_b128 v[{OL+4*k}:{OL+4*k+3}], v{aPR} offset:{256+16*k}")
    ac = [vO + i for i in range(8)]
    for k in range(8):
        a(f"s_waitcnt lgkmcnt({15 - k})")
        for p in range(4 * k, 4 * k + 4):
            j = 2 * (p & 1)
            c0 = "0" if p < 2 else f"v{ac[j]}"
            c1 = "0" if p < 2 else f"v{ac[j+1]}"
            a(f"v_dot2_f32_bf16 v{ac[j]}, v{Wlo[p]}, v{OH+p}, {c0}")
            a(f"v_dot2_f32_bf16 v{ac[j+1]}, v{Whi[p]}, v{OH+p}, {c1}")
    for k in range(8):
        a(f"s_waitcnt lgkmcnt({7 - k})")
        for p in range(4 * k, 4 * k + 4):
            j = 4 + 2 * (p & 1)
            c0 = "0" if p < 2 else f"v{ac[j]}"
            c1 = "0" if p < 2 else f"v{ac[j+1]}"
            a(f"v_dot2_f32_bf16 v{ac[j]}, v{Wlo[p]}, v{OL+p}, {c0}")
            a(f"v_dot2_f32_bf16 v{ac[j+1]}, v{Whi[p]}, v{OL+p}, {c1}")
    a("s_nop 2")
    a(f"v_add_f32 v{ac[0]}, v{ac[0]}, v{ac[2]}")
    a(f"v_add_f32 v{ac[1]}, v{ac[1]}, v{ac[3]}")
    a(f"v_add_f32 v{ac[4]}, v{ac[4]}, v{ac[6]}")
    a(f"v_add_f32 v{ac[5]}, v{ac[5]}, v{ac[7]}")
    a(f"v_add_f32 v{ac[0]}, v{ac[0]}, v{ac[4]}")
    a(f"v_add_f32 v{ac[1]}, v{ac[1]}, v{ac[5]}")
    a("s_nop 1")
    a(f"v_permlane32_swap_b32 v{ac[0]}, v{ac[1]}")
    a(f"v_add_f32 v{ac[0]}, v{ac[0]}, v{ac[1]}")
    a(f"buffer_store_dword v{ac[0]}, v{aY}, s[{SWS}:{SWS+3}], s60 offen")
    STAMP(3)
    STAMP_STORE(6, ["s_lshl_b32 s61, s2, 4", "s_add_u32 s61, s61, s3", "s_lshl_b32 s61, s61, 5"], SWS, vQ)
    if stamp:
        a("s_cmp_ge_u32 s3, 4")
        a("s_cbranch_scc1 L1_nolog")
        a("s_lshl_b32 s61, s3, 9")
        a(f"v_lshlrev_b32 v{vQ}, 3, v0")
        a(f"v_add_u32 v{vQ+1}, s61, v{vQ}")
        a(f"ds_read_b64 v[{vQ+2}:{vQ+3}], v{vQ+1} offset:{L_LOG}")
        a("s_lshl_b32 s70, s2, 11")
        a("s_add_u32 s61, s61, s70")
        a(f"s_add_u32 s61, s61, {WS_ST + 262144}")
        a("s_waitcnt lgkmcnt(0)")
        a(f"buffer_store_dwordx2 v[{vQ+2}:{vQ+3}], v{vQ}, s[{SWS}:{SWS+3}], s61 offen")
        a.label("L1_nolog")
    a("s_cmp_eq_u32 s84, 1")
    a("s_cbranch_scc0 L1_noffn")
    a("s_lshl_b32 s61, s85, 6")
    a(f"s_add_u32 s61, s61, {WS_BP}")
    a(f"s_add_u32 s70, s61, {32*256*64}")
    for b in range(2):
        so = "s61" if b == 0 else "s70"
        a(f"buffer_store_dwordx4 v[{fK+b*8}:{fK+b*8+3}], v{fK+16}, s[{SWS}:{SWS+3}], {so} offen")
        a(f"buffer_store_dwordx4 v[{fK+b*8+4}:{fK+b*8+7}], v{fK+16}, s[{SWS}:{SWS+3}], {so} offen offset:16")
    a.label("L1_noffn")
    a("s_cmp_lg_u32 s3, 0")
    a("s_cbranch_scc1 L1_done")
    a("s_lshl_b32 s61, s63, 7")
    a("s_add_u32 s61, s61, s69")
    a("s_lshl_b32 s61, s61, 3")
    a(f"s_add_u32 s61, s61, {WS_ML}")
    a(f"v_mov_b32 v{x1}, 0")
    a("v_cmp_eq_u32 vcc, 0, v0")
    a("s_and_saveexec_b64 s[70:71], vcc")
    assert Mt % 2 == 0 and Lt == Mt + 1
    a(f"buffer_store_dwordx2 v[{Mt}:{Lt}], v{x1}, s[{SWS}:{SWS+3}], s61 offen")
    a.label("L1_done")
    a("s_endpgm")

    a.q = []
    a.raw(".globl fin_kernel")
    a.raw(".p2align 8")
    a.raw(".type fin_kernel,@function")
    a.label("fin_kernel")
    a("s_cmp_ge_u32 s2, 64")
    a("s_cbranch_scc1 L2_done")
    STAMP(0)
    a("s_load_dwordx2 s[4:5], s[0:1], 0")
    a("s_load_dwordx8 s[20:27], s[0:1], 64")
    a("v_lshrrev_b32 v1, 6, v0")
    a("v_and_b32 v2, 15, v0")
    a("v_lshrrev_b32 v3, 4, v0")
    a("v_readfirstlane_b32 s3, v1")
    a("s_lshr_b32 s63, s2, 5")
    a("v_lshlrev_b32 v4, 2, v2")
    a("v_lshl_add_u32 v4, v3, 9, v4")
    a("v_lshlrev_b32 v5, 6, v3")
    a("v_mul_u32_u24 v6, 896, v3")
    a("v_lshl_add_u32 v6, v2, 2, v6")
    a("v_lshlrev_b32 v7, 2, v0")
    a("s_lshl_b32 s60, s2, 13")
    a("s_lshl_b32 s61, s63, 10")
    a(f"s_add_u32 s62, s61, {WS_ML}")
    a("s_lshl_b32 s64, s2, 14")
    a(f"s_add_u32 s64, s64, {WS_BP}")
    a("s_waitcnt lgkmcnt(0)")
    srd(SWS, 26, WS_BYTES)
    srd(SX, 4, 2048)
    srd(32, 20, 1024)
    srd(36, 22, 2048)
    ML = 24
    for i in range(4):
        a.vm(f"buffer_load_dwordx4 v[{ML+4*i}:{ML+4*i+3}], v5, s[{SWS}:{SWS+3}], s62 offen offset:{i*16}", "ml")
    Y = 16
    for i in range(8):
        a.vm(f"buffer_load_dword v{Y+i}, v4, s[{SWS}:{SWS+3}], s60 offen offset:{i*64}", "y")
    BP = 40
    for i in range(14):
        a.vm(f"buffer_load_dword v{BP+i}, v6, s[{SWS}:{SWS+3}], s64 offen offset:{i*64}", "bp")
    a.vm(f"buffer_load_dword v54, v7, s[{SX}:{SX+3}], s61 offen", "g")
    a.vm("buffer_load_dword v55, v7, s[32:35], 0 offen", "g")
    sC2 = 67
    a(f"s_mov_b32 s{sC2}, 0x{f2u(LOG2E if mimic else LOG2E * SCALE):08x}")
    a.wait_vm("ml")
    for hh in range(2):
        B = ML + hh * 8
        Mx, Ls = 8 + hh * 2, 9 + hh * 2
        a(f"v_max3_f32 v{Mx}, v{B}, v{B+2}, v{B+4}")
        a(f"v_max_f32 v{Mx}, v{B+6}, v{Mx}")
        for s_ in range(4):
            a(f"v_sub_f32 v{B+2*s_}, v{B+2*s_}, v{Mx}")
        for s_ in range(4):
            a(f"v_mul_f32 v{B+2*s_}, s{sC2}, v{B+2*s_}")
        for s_ in range(4):
            a(f"v_exp_f32 v{B+2*s_}, v{B+2*s_}")
        a("s_nop 0")
        a(f"v_mul_f32 v{Ls}, v{B}, v{B+1}")
        for s_ in range(1, 4):
            a(f"v_fma_f32 v{Ls}, v{B+2*s_}, v{B+2*s_+1}, v{Ls}")
        a(f"v_rcp_f32 v{Ls}, v{Ls}")
    a.wait_vm("y")
    for hh in range(2):
        B = ML + hh * 8
        Mx = 8 + hh * 2
        a(f"v_mul_f32 v{Mx}, v{B}, v{Y+hh*4}")
        for s_ in range(1, 4):
            a(f"v_fma_f32 v{Mx}, v{B+2*s_}, v{Y+hh*4+s_}, v{Mx}")
    a("v_mul_f32 v12, v8, v9")
    a("v_fma_f32 v12, v10, v11, v12")
    a.wait_vm("bp")
    for i in range(7):
        a(f"v_add_f32 v{BP+2*i}, v{BP+2*i}, v{BP+2*i+1}")
    a(f"v_add_f32 v{BP}, v{BP}, v{BP+2}")
    a(f"v_add_f32 v{BP+4}, v{BP+4}, v{BP+6}")
    a(f"v_add_f32 v{BP+8}, v{BP+8}, v{BP+10}")
    a(f"v_add_f32 v{BP}, v{BP}, v{BP+4}")
    a(f"v_add_f32 v{BP+8}, v{BP+8}, v{BP+12}")
    a(f"v_add_f32 v13, v{BP}, v{BP+8}")
    a.wait_vm("g")
    a("v_lshlrev_b32 v56, 16, v54")
    a("v_and_b32 v57, 0xffff0000, v54")
    a("v_lshlrev_b32 v58, 16, v55")
    a("v_and_b32 v59, 0xffff0000, v55")
    a("v_mul_f32 v56, v56, v58")
    a("v_mul_f32 v57, v57, v59")
    a("v_cvt_pk_bf16_f32 v56, v56, v57")
    a("v_lshlrev_b32 v57, 16, v56")
    a("v_and_b32 v56, 0xffff0000, v56")
    a("v_add_f32 v14, v56, v57")
    a("v_permlane32_swap_b32 v12, v13")
    a("v_add_f32 v12, v12, v13")
    a("v_mov_b32 v13, v12")
    a("v_mov_b32 v15, v14")
    a("s_nop 0")
    a("v_permlane16_swap_b32 v12, v13")
    a("v_permlane32_swap_b32 v14, v15")
    a("v_add_f32 v12, v12, v13")
    a("v_add_f32 v14, v14, v15")
    a("v_mov_b32 v15, v14")
    a("s_nop 1")
    a("v_permlane16_swap_b32 v14, v15")
    a("v_add_f32 v14, v14, v15")
    for rr in (8, 4, 2, 1):
        a("s_nop 1")
        a(f"v_add_f32_dpp v14, v14, v14 row_ror:{rr} row_mask:0xf bank_mask:0xf")
    a("v_and_b32 v4, 63, v0")
    a("v_lshrrev_b32 v5, 5, v4")
    a("v_lshlrev_b32 v5, 6, v5")
    a("v_lshl_add_u32 v5, v2, 2, v5")
    a("s_lshl_b32 s61, s3, 7")
    a("v_add_u32 v5, s61, v5")
    a("ds_write_b32 v5, v12")
    a("s_lshl_b32 s61, s3, 2")
    a("v_mov_b32 v6, s61")
    a("ds_write_b32 v6, v14 offset:512")
    a("s_waitcnt lgkmcnt(0)")
    a("s_barrier")
    a("s_cmp_lg_u32 s3, 0")
    a("s_cbranch_scc1 L2_done")
    a("v_lshlrev_b32 v5, 2, v2")
    for w in range(4):
        a(f"ds_read_b32 v{16+w}, v5 offset:{w*128}")
        a(f"ds_read_b32 v{20+w}, v5 offset:{w*128+64}")
    a("v_mov_b32 v6, 0")
    a("ds_read_b128 v[24:27], v6 offset:512")
    a("s_waitcnt lgkmcnt(0)")
    a("v_add_f32 v16, v16, v17"); a("v_add_f32 v18, v18, v19"); a("v_add_f32 v16, v16, v18")
    a("v_add_f32 v20, v20, v21"); a("v_add_f32 v22, v22, v23"); a("v_add_f32 v20, v20, v22")
    a("v_add_f32 v24, v24, v25"); a("v_add_f32 v26, v26, v27"); a("v_add_f32 v24, v24, v26")
    def rbf(r):
        a(f"v_cvt_pk_bf16_f32 v{r}, v{r}, v{r}")
        a(f"v_lshlrev_b32 v{r}, 16, v{r}")
    rbf(16); rbf(20); rbf(24)
    a(f"v_mul_f32 v24, 0x{f2u(-LOG2E):08x}, v24")
    a("v_exp_f32 v24, v24")
    a("s_nop 0")
    a("v_add_f32 v24, 1.0, v24")
    a("v_rcp_f32 v24, v24")
    a("s_nop 0")
    rbf(24)
    a("v_sub_f32 v25, 1.0, v24")
    rbf(25)
    a("v_mul_f32 v16, v24, v16"); rbf(16)
    a("v_mul_f32 v20, v25, v20"); rbf(20)
    a("v_add_f32 v16, v16, v20")
    a("v_cvt_pk_bf16_f32 v16, v16, v16")
    a("s_lshl_b32 s61, s2, 5")
    a("v_lshlrev_b32 v5, 1, v2")
    a("v_cmp_gt_u32 vcc, 16, v0")
    a("s_and_saveexec_b64 s[70:71], vcc")
    a("buffer_store_short v16, v5, s[36:39], s61 offen")
    STAMP(1)
    STAMP_STORE(2, ["s_lshl_b32 s61, s2, 4", "s_add_u32 s61, s61, 131072"], SWS, 40)
    if dbg:
        a("s_cmp_lg_u32 s2, 0")
        a("s_cbranch_scc1 L2_done")
        a("v_lshrrev_b32 v30, 2, v0")
        a("v_mul_u32_u24 v30, 85*512, v30")
        a("v_and_b32 v31, 3, v0")
        a("v_lshl_add_u32 v30, v31, 2, v30")
        a(f"s_mov_b32 s61, {WS_ST}")
        a(f"buffer_load_dword v32, v30, s[{SWS}:{SWS+3}], s61 offen")
        a("s_mov_b32 s28, s24"); a("s_mov_b32 s29, s25"); a("s_mov_b32 s30, 256"); a("s_mov_b32 s31, 0x00020000")
        a("v_lshlrev_b32 v33, 2, v0")
        a("s_waitcnt vmcnt(0)")
        a("v_cmp_eq_u32 vcc, 12, v0")
        a("v_mov_b32 v34, s90")
        a("s_nop 1")
        a("v_cndmask_b32 v32, v32, v34, vcc")
        a("v_cmp_eq_u32 vcc, 13, v0")
        a("v_mov_b32 v34, s92")
        a("s_nop 1")
        a("v_cndmask_b32 v32, v32, v34, vcc")
        a("buffer_store_dword v32, v33, s[28:31], 0 offen")
    a.label("L2_done")
    a("s_endpgm")

    a.raw('.section .rodata,"a"')
    def kd(name, nv):
        a.raw(".p2align 6")
        a.raw(f".amdhsa_kernel {name}")
        a.raw(f"  .amdhsa_next_free_vgpr {nv}")
        a.raw("  .amdhsa_next_free_sgpr 102")
        a.raw(f"  .amdhsa_accum_offset {(nv+3)//4*4}")
        a.raw("  .amdhsa_group_segment_fixed_size 0")
        a.raw("  .amdhsa_kernarg_size 96")
        a.raw("  .amdhsa_user_sgpr_count 2")
        a.raw("  .amdhsa_user_sgpr_kernarg_segment_ptr 1")
        a.raw("  .amdhsa_system_sgpr_workgroup_id_x 1")
        a.raw(".end_amdhsa_kernel")
    kd("attn_kernel", NV1)
    kd("fin_kernel", 64)
    return "\n".join(a.L) + "\n"

if __name__ == "__main__":
    import argparse
    ap = argparse.ArgumentParser()
    ap.add_argument("-o", default=f"cdna_kernels/{KN}.s")
    ap.add_argument("--pol_kv", default="nt")
    ap.add_argument("--pol_w", default="")
    ap.add_argument("--nb", type=int, default=4)
    ap.add_argument("--nt", type=int, default=4)
    ap.add_argument("--mimic", action="store_true")
    ap.add_argument("--stamp", action="store_true")
    ap.add_argument("--ypace", type=int, default=2)
    ap.add_argument("--wops", type=int, default=2)
    ap.add_argument("--kpat", default="mc")
    ap.add_argument("--kpeel", default="c")
    ap.add_argument("--dbg", action="store_true")
    ap.add_argument("--oprio", type=int, default=1)
    ap.add_argument("--yprio", type=int, default=3)
    ap.add_argument("--wqc", type=int, default=8)
    args = ap.parse_args()
    open(args.o, "w").write(gen(pol_kv=args.pol_kv, pol_w=args.pol_w, NB=args.nb, NT=args.nt, mimic=args.mimic,
                                stamp=args.stamp, ypace=args.ypace, wo_per_step=args.wops, kpat=args.kpat, kpeel=args.kpeel, dbg=args.dbg, oprio=args.oprio, yprio=args.yprio, wq_chunk=args.wqc))
```

```python
import sys, math, struct

KN = "gated_mix__mha_block_cached__dense_activation_silu__decode"

def f2u(x):
    return struct.unpack("<I", struct.pack("<f", x))[0]

class Asm:
    def __init__(self):
        self.L = []
        self.q = []
    def __call__(self, s):
        self.L.append("  " + s)
    def label(self, s):
        self.L.append(s + ":")
    def raw(self, s):
        self.L.append(s)
    def vm(self, s, tag):
        self.L.append("  " + s)
        self.q.append(tag)
    def wait_vm(self, *tags):
        last = -1
        for i, t in enumerate(self.q):
            if t in tags:
                last = i
        if last < 0:
            return
        n = len(self.q) - 1 - last
        if n > 63:
            n = 63
            last = len(self.q) - 1 - n
        self.L.append(f"  s_waitcnt vmcnt({n})")
        self.q = self.q[last + 1:]

WS_Y = 0
WS_ML = 512 * 1024
WS_BP = 1024 * 1024
WS_ST = 4 * 1024 * 1024
WS_BYTES = 536870912

LOG2E = 1.4426950408889634
SCALE = 128 ** -0.5
OOB = 0x40000000

def gen(pol_kv="nt", pol_w="", NB=4, NT=4, mimic=False, stamp=False, ypace=2, wo_per_step=2, kpat="mc", kpeel="c", dbg=False, oprio=3, yprio=2, wq_chunk=8, R0=30, abl="", ystamp=False, clk=False):
    a = Asm()
    D = NB - 1
    U = {2: 4, 3: 6, 4: 4}[NB]
    def STAMP(k):
        if stamp or dbg:
            a(f"s_memrealtime s[{90+2*k}:{91+2*k}]")
    def STAMP_STORE(n, base_expr_lines, srd, vtmp):
        if not (stamp or dbg): return
        a("s_waitcnt lgkmcnt(0)")
        for l in base_expr_lines: a(l)
        a(f"s_add_u32 s61, s61, {WS_ST}")
        for k in range(n):
            a(f"v_mov_b32 v{vtmp+1+k}, s{90+2*k}")
        a(f"v_mov_b32 v{vtmp}, 0")
        for k in range(n):
            a(f"buffer_store_dword v{vtmp+1+k}, v{vtmp}, s[{srd}:{srd+3}], s61 offen offset:{4*k}")

    hdr = open(f"cdna_kernels/{KN}.s.ref").read().split("; Override launch")[0]
    a.raw(hdr.rstrip())
    a.raw("; @launch kernel=attn_kernel grid=(256,1,1) block=(512,1,1) lds=152064")
    a.raw("; @launch kernel=fin_kernel grid=(64,1,1) block=(256,1,1) lds=1024")
    a.raw('.amdgcn_target "amdgcn-amd-amdhsa--gfx950"')
    a.raw(".text")

    a.raw(".globl attn_kernel")
    a.raw(".p2align 8")
    a.raw(".type attn_kernel,@function")
    a.label("attn_kernel")
    a("s_cmp_ge_u32 s2, 256")
    a("s_cbranch_scc1 L1_done")
    STAMP(0)
    a("s_load_dwordx16 s[4:19], s[0:1], 0")
    a("s_load_dwordx8 s[20:27], s[0:1], 64")
    a("v_lshrrev_b32 v1, 6, v0")
    a("v_and_b32 v0, 63, v0")
    a("s_nop 0")
    a("v_readfirstlane_b32 s3, v1")
    sSELLO, sSELHI, sC = 65, 66, 67
    a(f"s_mov_b32 s{sSELLO}, 0x05040100")
    a(f"s_mov_b32 s{sSELHI}, 0x07060302")
    if mimic:
        a(f"s_mov_b32 s{sC}, 0x{f2u(LOG2E):08x}")
        a(f"s_mov_b32 s68, 0x{f2u(SCALE):08x}")
    else:
        a(f"s_mov_b32 s{sC}, 0x{f2u(LOG2E * SCALE):08x}")
    a("s_and_b32 s60, s2, 7")
    a("s_lshr_b32 s61, s2, 3")
    a("s_and_b32 s62, s61, 3")
    a("s_lshl_b32 s62, s62, 3")
    a("s_add_u32 s62, s62, s60")
    a("s_lshr_b32 s61, s61, 2")
    a("s_lshr_b32 s63, s61, 2")
    a("s_and_b32 s64, s61, 3")

    vG, vCc, vKO, vVO = 1, 2, 3, 4
    vM, vL, vLD = 5, 6, 7
    vT = 8
    vQ = 24
    vO = 40
    vS = [48, 52]
    vQc = 52
    vR = 56
    vW = vR + 128
    vCA, vC1 = vW + 65, vW + 66
    NV1 = vW + 70
    assert NV1 <= 256 and NB <= 4 and NT <= 6
    def KB(buf): return vR + buf * 32
    def VB(buf): return vR + buf * 32 + 16

    L_QP, L_QB, L_OP, L_ML, L_CNT, L_P = 0, 2048, 4096, 8192, 8328, 8448
    L_W = 16384

    a(f"v_mov_b32 v{vCA}, 0")
    a(f"v_mov_b32 v{vC1}, 1")
    a(f"v_lshrrev_b32 v{vG}, 4, v0")
    a(f"v_and_b32 v{vCc}, 15, v0")
    a(f"v_lshlrev_b32 v{vKO}, 8, v{vCc}")
    a(f"v_lshl_add_u32 v{vKO}, v{vG}, 4, v{vKO}")
    a(f"v_lshlrev_b32 v{vVO}, 4, v{vCc}")
    a(f"v_lshl_add_u32 v{vVO}, v{vG}, 10, v{vVO}")
    a(f"v_and_b32 v{vT}, 1, v{vG}")
    a(f"v_lshrrev_b32 v{vT+1}, 1, v{vG}")
    a(f"v_lshlrev_b32 v{vLD}, 5, v{vCc}")
    a(f"v_lshl_add_u32 v{vLD}, v{vT}, 3, v{vLD}")
    a(f"v_lshl_add_u32 v{vLD}, v{vT+1}, 4, v{vLD}")
    a("s_lshl_b32 s61, s3, 9")
    a(f"v_add_u32 v{vLD}, s61, v{vLD}")
    a("s_lshl_b32 s85, s63, 5")
    a("s_add_u32 s85, s85, s62")
    a("s_lshl_b32 s60, s85, 21")
    a("s_lshl_b32 s71, s3, 14")
    a(f"s_add_u32 s71, s71, {L_W}")
    sFF, sB0 = 88, 89
    a(f"s_mov_b32 s{sB0}, {4*NT}")
    sOFF = 72
    sWP, sTMP = 86, 87
    a(f"s_mov_b32 s{sWP}, 0")
    a("s_mov_b32 s84, 0")
    a("s_mov_b32 s82, 0")
    a("s_waitcnt lgkmcnt(0)")
    def srd(d, p, size):
        a(f"s_mov_b32 s{d}, s{p}")
        a(f"s_mov_b32 s{d+1}, s{p+1}")
        a(f"s_mov_b32 s{d+2}, 0x{size:x}")
        a(f"s_mov_b32 s{d+3}, 0x00020000")
    SX, SWQ, SK, SV, SWO, SWS, SW1, SW2 = 28, 32, 36, 40, 44, 48, 52, 56
    srd(SX, 4, 2048)
    srd(SWQ, 10, 512 * 4096 * 2)
    srd(SK, 6, 128 << 20)
    srd(SV, 8, 128 << 20)
    srd(SWO, 12, 4096 * 512 * 2)
    srd(SWS, 26, WS_BYTES)
    srd(SW1, 16, 512 * 1792 * 2)
    srd(SW2, 18, 1792 * 512 * 2)
    sR0, sB2, sNTL = 8, 9, 10
    rem = 128 - 4 * R0
    e1 = -(-rem // 3); e2 = -(-(rem - e1) // 2); e3 = rem - e1 - e2
    a("s_cmp_lt_u32 s85, 56")
    a("s_cbranch_scc1 L1_ffngrp")
    a(f"s_mov_b32 s{sR0}, 32"); a(f"s_mov_b32 s{sB2}, 0"); a(f"s_mov_b32 s{sNTL}, 128"); a(f"s_mov_b32 s{sFF}, 0")
    a("s_branch L1_mapdone")
    a.label("L1_ffngrp")
    a(f"s_mov_b32 s{sR0}, {R0}")
    a(f"s_mov_b32 s{sB2}, {4*R0}"); a(f"s_mov_b32 s{sNTL}, {4*(R0+e1)}")
    a("s_cmp_eq_u32 s64, 2")
    a(f"s_cselect_b32 s{sB2}, {4*R0+e1}, s{sB2}"); a(f"s_cselect_b32 s{sNTL}, {4*(R0+e2)}, s{sNTL}")
    a("s_cmp_eq_u32 s64, 3")
    a(f"s_cselect_b32 s{sB2}, {4*R0+e1+e2}, s{sB2}"); a(f"s_cselect_b32 s{sNTL}, {4*(R0+e3)}, s{sNTL}")
    a("s_cmp_eq_u32 s64, 0")
    a(f"s_cselect_b32 s{sNTL}, {4*R0}, s{sNTL}")
    a(f"s_cselect_b32 s{sFF}, 1, 0")
    a.label("L1_mapdone")
    def tau_to_off(src, dst):
        a(f"s_lshr_b32 s12, s{src}, 2")
        a("s_lshl_b32 s13, s12, 2")
        a("s_add_u32 s13, s13, s64")
        a(f"s_sub_u32 s14, s12, s{sR0}")
        a(f"s_add_u32 s14, s14, s{sB2}")
        a(f"s_cmp_lt_u32 s12, s{sR0}")
        a("s_cselect_b32 s13, s13, s14")
        a("s_lshl_b32 s13, s13, 14")
        a(f"s_and_b32 s12, s{src}, 3")
        a("s_lshl_b32 s12, s12, 12")
        a("s_add_u32 s13, s13, s12")
        a("s_add_u32 s13, s13, s60")
        a(f"s_cmp_lt_u32 s{src}, s{sNTL}")
        a(f"s_cselect_b32 s{dst}, s13, 0x{OOB:x}")

    def issue_K(seq, buf, pat="c", slot=None):
        if slot is None: slot = seq % U
        for j in range(4):
            r = KB(buf) + 4 * j
            if pat == "c":
                a.vm(f"buffer_load_dwordx4 v[{r}:{r+3}], v{vVO}, s[{SK}:{SK+3}], s{sOFF + slot} offen offset:{j*256} {pol_kv}", f"K{seq}")
            else:
                a.vm(f"buffer_load_dwordx4 v[{r}:{r+3}], v{vKO}, s[{SK}:{SK+3}], s{sOFF + slot} offen offset:{j*64} {pol_kv}", f"K{seq}")
    def issue_V(seq, buf, slot=None):
        if slot is None: slot = seq % U
        for r_ in range(4):
            r = VB(buf) + 4 * r_
            a.vm(f"buffer_load_dwordx4 v[{r}:{r+3}], v{vVO}, s[{SV}:{SV+3}], s{sOFF + slot} offen offset:{r_*256} {pol_kv}", f"V{seq}")

    vGR = vT + 15
    def grab_issue():
        a("s_mov_b64 exec, 1")
        a(f"ds_add_rtn_u32 v{vGR}, v{vCA}, v{vC1} offset:{L_CNT}")
        a("s_mov_b64 exec, -1")
    L_LOG = 12544
    vLG = NV1 - 1
    def grab_resolve(seq):
        a("s_waitcnt lgkmcnt(0)")
        a(f"v_readfirstlane_b32 s61, v{vGR}")
        if stamp:
            a(f"v_mov_b32 v{vT+12}, s61")
            a(f"v_mov_b32 v{vT+13}, s100")
            a(f"ds_write_b64 v{vLG}, v[{vT+12}:{vT+13}] offset:{L_LOG}")
            a(f"v_add_u32 v{vLG}, 8, v{vLG}")
            a("s_memrealtime s[100:101]")
        tau_to_off(61, sOFF + seq % U)

    def reduce_scatter8(regs):
        a("s_nop 2")
        for i in range(4):
            a(f"v_permlane32_swap_b32 v{regs[i]}, v{regs[i+4]}")
        for i in range(4):
            a(f"v_add_f32 v{regs[i]}, v{regs[i]}, v{regs[i+4]}")
        a("s_nop 1")
        for i in range(2):
            a(f"v_permlane16_swap_b32 v{regs[i]}, v{regs[i+2]}")
        for i in range(2):
            a(f"v_add_f32 v{regs[i]}, v{regs[i]}, v{regs[i+2]}")

    def qfrag():
        a(f"v_lshlrev_b32 v{vT}, 3, v0")
        for w in range(4):
            a(f"ds_read_b64 v[{vQ+2*w}:{vQ+2*w+1}], v{vT} offset:{L_QP + w*512}")
        a("s_lshl_b32 s61, s3, 8")
        a(f"v_lshlrev_b32 v{vT+1}, 2, v0")
        a(f"v_add_u32 v{vT+1}, s61, v{vT+1}")
        a(f"v_lshlrev_b32 v{vT+2}, 4, v{vCc}")
        a(f"v_add_u32 v{vT+2}, s61, v{vT+2}")
        a(f"v_lshlrev_b32 v{vT+4}, 4, v{vG}")
        a(f"v_add_u32 v{vT+4}, s61, v{vT+4}")
        a("s_waitcnt lgkmcnt(0)")
        for (x, y) in ((0, 1), (2, 3), (0, 2)):
            a(f"v_add_f32 v{vQ+2*x}, v{vQ+2*x}, v{vQ+2*y}")
            a(f"v_add_f32 v{vQ+2*x+1}, v{vQ+2*x+1}, v{vQ+2*y+1}")
        a(f"v_cvt_pk_bf16_f32 v{vT+3}, v{vQ}, v{vQ+1}")
        a(f"ds_write_b32 v{vT+1}, v{vT+3} offset:{L_QB}")
        a("s_waitcnt lgkmcnt(0)")
        a(f"ds_read_b128 v[{vQc}:{vQc+3}], v{vT+2} offset:{L_QB}")
        for j in range(4):
            a(f"ds_read_b128 v[{vQ+4*j}:{vQ+4*j+3}], v{vT+4} offset:{L_QB + j*64}")
        a(f"v_mov_b32 v{vM}, 0x{f2u(-3.0e38):08x}")
        a(f"v_mov_b32 v{vL}, 0")
        for i in range(8):
            a(f"v_mov_b32 v{vO+i}, 0")
        a("s_waitcnt lgkmcnt(0)")

    def qk(kreg, S, pat="c"):
        if pat == "m":
            for j in range(4):
                c = "0" if j == 0 else f"v[{S}:{S+3}]"
                a(f"v_mfma_f32_16x16x32_bf16 v[{S}:{S+3}], v[{kreg+4*j}:{kreg+4*j+3}], v[{vQ+4*j}:{vQ+4*j+3}], {c}")
            a("s_nop 7")
            return
        for d in range(4):
            for r in range(4):
                c = "0" if d == 0 else f"v{S+r}"
                a(f"v_dot2_f32_bf16 v{S+r}, v{kreg+4*r+d}, v{vQc+d}, {c}")
        a("s_nop 0")
        for rr in (8, 4, 2, 1):
            for r in range(4):
                a(f"v_add_f32_dpp v{S+r}, v{S+r}, v{S+r} row_ror:{rr} row_mask:0xf bank_mask:0xf")

    mN, al, mc, ps, t1, t2, P01, P23 = vT, vT + 1, vT + 2, vT + 4, vT + 8, vT + 9, vT + 10, vT + 11
    pt = [vT + 12, vT + 13, vT + 14, vT + 3]
    def softmax_pv(S, vreg):
        if mimic:
            for h2 in range(2):
                a(f"v_cvt_pk_bf16_f32 v{t1}, v{S+2*h2}, v{S+2*h2+1}")
                a(f"v_lshlrev_b32 v{S+2*h2}, 16, v{t1}")
                a(f"v_and_b32 v{S+2*h2+1}, 0xffff0000, v{t1}")
                a(f"v_mul_f32 v{S+2*h2}, s68, v{S+2*h2}")
                a(f"v_mul_f32 v{S+2*h2+1}, s68, v{S+2*h2+1}")
                a(f"v_cvt_pk_bf16_f32 v{t1}, v{S+2*h2}, v{S+2*h2+1}")
                a(f"v_lshlrev_b32 v{S+2*h2}, 16, v{t1}")
                a(f"v_and_b32 v{S+2*h2+1}, 0xffff0000, v{t1}")
        a(f"v_max3_f32 v{mN}, v{S}, v{S+1}, v{vM}")
        a(f"v_max3_f32 v{mN}, v{S+2}, v{S+3}, v{mN}")
        a(f"v_sub_f32 v{al}, v{vM}, v{mN}")
        a(f"v_mul_f32 v{mc}, s{sC}, v{mN}")
        a(f"v_mul_f32 v{al}, s{sC}, v{al}")
        for i in range(4):
            a(f"v_fma_f32 v{ps+i}, v{S+i}, s{sC}, -v{mc}")
        a(f"v_exp_f32 v{al}, v{al}")
        for i in range(4):
            a(f"v_exp_f32 v{ps+i}, v{ps+i}")
        a(f"v_mov_b32 v{vM}, v{mN}")
        for i in range(8):
            a(f"v_mul_f32 v{vO+i}, v{al}, v{vO+i}")
        a(f"v_cvt_pk_bf16_f32 v{P01}, v{ps}, v{ps+1}")
        a(f"v_cvt_pk_bf16_f32 v{P23}, v{ps+2}, v{ps+3}")
        a(f"v_add_f32 v{t1}, v{ps}, v{ps+1}")
        a(f"v_add_f32 v{t2}, v{ps+2}, v{ps+3}")
        a(f"v_add_f32 v{t1}, v{t1}, v{t2}")
        a(f"v_fma_f32 v{vL}, v{vL}, v{al}, v{t1}")
        for pr, P in ((0, P01), (2, P23)):
            r0, r1 = vreg + 4 * pr, vreg + 4 * (pr + 1)
            for d in range(4):
                tl, th = pt[2 * (d & 1)], pt[2 * (d & 1) + 1]
                a(f"v_perm_b32 v{tl}, v{r1+d}, v{r0+d}, s{sSELLO}")
                a(f"v_perm_b32 v{th}, v{r1+d}, v{r0+d}, s{sSELHI}")
                a(f"v_dot2_f32_bf16 v{vO+2*d}, v{tl}, v{P}, v{vO+2*d}")
                a(f"v_dot2_f32_bf16 v{vO+2*d+1}, v{th}, v{P}, v{vO+2*d+1}")

    vWA = vW + 67
    def wo_setup():
        a(f"v_lshrrev_b32 v{vWA}, 3, v0")
        a(f"v_lshlrev_b32 v{vWA}, 10, v{vWA}")
        a(f"v_and_b32 v{vT+12}, 7, v0")
        a(f"v_lshl_add_u32 v{vWA}, v{vT+12}, 4, v{vWA}")
        a("s_lshl_b32 s83, s62, 17")
        a("s_lshl_b32 s61, s3, 7")
        a("s_add_u32 s83, s83, s61")
    def wo_piece(n, track):
        sl, i = n >> 4, n & 15
        if "wo" in abl: return
        a(f"s_add_u32 m0, s71, {sl*65536 + i*1024}")
        a(f"s_add_u32 s61, s83, {sl*512 + i*8192}")
        ins = f"buffer_load_dwordx4 v{vWA}, s[{SWO}:{SWO+3}], s61 offen lds {pol_w}"
        if track: a.vm(ins, "wo")
        else: a(ins)
    def wo_flag_set():
        a("s_lshl_b32 s61, s3, 2")
        a(f"v_mov_b32 v{vT+12}, s61")
        a(f"ds_write_b32 v{vT+12}, v{vC1} offset:{L_CNT+8}")
    def wo_flag_wait():
        n = npoll[0]; npoll[0] += 1
        a("s_sub_u32 s61, s3, 4")
        a("s_lshl_b32 s61, s61, 2")
        a(f"v_mov_b32 v{vT+1}, s61")
        a.label(f"L1_poll{n}")
        a(f"ds_read_b32 v{vT}, v{vT+1} offset:{L_CNT+8}")
        a("s_waitcnt lgkmcnt(0)")
        a(f"v_readfirstlane_b32 s61, v{vT}")
        a("s_cmp_eq_u32 s61, 1")
        a(f"s_cbranch_scc1 L1_polled{n}")
        a("s_sleep 8")
        a(f"s_branch L1_poll{n}")
        a.label(f"L1_polled{n}")
    npoll = [0]

    def BF(ks, ct): return vW + (ks * 4 + ct) * 4
    def wperm():
        a(f"v_lshrrev_b32 v{vT+12}, 2, v{vCc}")
        a(f"v_lshl_add_u32 v{vT+12}, v{vG}, 3, v{vT+12}")
        a(f"v_lshlrev_b32 v{vT+12}, 7, v{vT+12}")
        a(f"v_and_b32 v{vT+13}, 3, v{vCc}")
        a(f"v_lshl_add_u32 v{vT+12}, v{vT+13}, 3, v{vT+12}")
        a(f"v_add_u32 v{vT+12}, s71, v{vT+12}")
        for ks in range(4):
            for ct in range(4):
                for hh in range(2):
                    r = BF(ks, ct) + 2 * hh
                    a(f"ds_read_b64_tr_b16 v[{r}:{r+1}], v{vT+12} offset:{(32*ks + 4*hh)*128 + ct*32}")
        a("s_waitcnt lgkmcnt(0)")
        a(f"s_mov_b32 s{sWP}, 1")

    def young_tiles_issue(lo, n):
        for i in range(lo, n):
            if ypace and i >= ypace:
                a.wait_vm(f"V{i-ypace}")
            issue_K(i, i, "c", i)
            issue_V(i, i, i)
    def young_tiles_process(n):
        for i in range(n):
            a.wait_vm(f"K{i}")
            qk(KB(i), vS[0])
            a.wait_vm(f"V{i}")
            softmax_pv(vS[0], VB(i))

    def lds_init_barrier():
        a(f"s_add_u32 s61, s{sB0}, {4*NB}")
        a(f"v_mov_b32 v{vT+6}, s61")
        for i in range(7, 12):
            a(f"v_mov_b32 v{vT+i}, 0")
        a(f"ds_write_b64 v{vCA}, v[{vT+6}:{vT+7}] offset:{L_CNT}")
        a(f"ds_write_b128 v{vCA}, v[{vT+8}:{vT+11}] offset:{L_CNT+8}")
        a("s_waitcnt lgkmcnt(0)")
        a("s_barrier")
    def q_wait():
        n = npoll[0]; npoll[0] += 1
        a.label(f"L1_poll{n}")
        a(f"ds_read_b32 v{vT}, v{vCA} offset:{L_CNT+4}")
        a("s_waitcnt lgkmcnt(0)")
        a(f"v_readfirstlane_b32 s61, v{vT}")
        a("s_cmp_ge_u32 s61, 4")
        a(f"s_cbranch_scc1 L1_polled{n}")
        a("s_sleep 1")
        a(f"s_branch L1_poll{n}")
        a.label(f"L1_polled{n}")
    a("s_cmp_lt_u32 s3, 4")
    a("s_cbranch_scc1 L1_pathA")
    a.q = []
    a(f"s_setprio {yprio}")
    a("s_sub_u32 s61, s3, 4")
    a(f"s_mul_i32 s61, s61, {NT}")
    a("s_mov_b32 s15, s61")
    tau_to_off(15, sOFF)
    if ystamp:
        a("s_memrealtime s[100:101]")
    young_tiles_issue(0, 1)
    for k in range(1, NT):
        a("s_add_u32 s15, s15, 1")
        tau_to_off(15, sOFF + k)
    lds_init_barrier()
    young_tiles_issue(1, NT)
    if ystamp:
        qsave = list(a.q)
        for i in range(NT):
            a.wait_vm(f"V{i}")
            if i >= NT - 4: a(f"s_memrealtime s[{92+2*(i-NT+4)}:{93+2*(i-NT+4)}]")
    q_wait()
    qfrag()
    if not ystamp: STAMP(1)
    young_tiles_process(NT)
    a("s_cmp_eq_u32 s3, 4")
    a("s_cbranch_scc0 L1_yexit")
    a(f"s_cmp_eq_u32 s{sFF}, 1")
    a("s_cbranch_scc0 L1_yexit")
    if "ffn" in abl: a("s_branch L1_yexit")
    a.q = []
    L_H = 147456
    hW, hX, hA, hT = vR, vR + 96, vW, vT
    hR, hC, hO1, hO2 = vW + 16, vW + 17, vW + 18, vW + 19
    a(f"v_lshrrev_b32 v{hR}, 2, v0")
    a(f"v_and_b32 v{hC}, 3, v0")
    a("s_mov_b32 s61, 114688")
    a(f"v_mul_lo_u32 v{hO1}, v{hR}, s61")
    a(f"v_lshl_add_u32 v{hO1}, v{hC}, 4, v{hO1}")
    a(f"v_lshlrev_b32 v{hT}, 6, v{hR}")
    a(f"v_lshlrev_b32 v{hO2}, 4, v0")
    for b in range(2):
        for k in range(4):
            r = hX + b * 16 + 4 * k
            a.vm(f"buffer_load_dwordx4 v[{r}:{r+3}], v{hT}, s[{SX}:{SX+3}], 0 offen offset:{b*1024 + k*16}", "hx")
    a("s_lshl_b32 s69, s85, 6")
    a("s_lshl_b32 s70, s85, 15")
    def h_issue_w1(ph):
        buf = ph % 3
        for i in range(8 * ph, 8 * ph + 8):
            if i & 1 == 0:
                a(f"s_add_u32 s61, s69, {i*3584}")
            r = hW + buf * 32 + (i & 7) * 4
            a.vm(f"buffer_load_dwordx4 v[{r}:{r+3}], v{hO1}, s[{SW1}:{SW1+3}], s61 offen offset:{(i&1)*3584} {pol_w}", f"w1_{ph}")
    def h_issue_w2(ph):
        buf = (ph + 4) % 3
        for j in range(8 * ph, 8 * ph + 8):
            if j & 3 == 0:
                a(f"s_add_u32 s61, s70, {j*1024}")
            r = hW + buf * 32 + (j & 7) * 4
            a.vm(f"buffer_load_dwordx4 v[{r}:{r+3}], v{hO2}, s[{SW2}:{SW2+3}], s61 offen offset:{(j&3)*1024} {pol_w}", f"w2_{ph}")
    h_issue_w1(0); h_issue_w1(1); h_issue_w1(2)
    for i in range(16):
        a(f"v_mov_b32 v{hA+i}, 0")
    def h_compute(buf, xs):
        for p in range(4):
            r0, r1 = hW + buf * 32 + 8 * p, hW + buf * 32 + 8 * p + 4
            for d in range(4):
                tl, th = hT + 2 + 2 * (d & 1), hT + 3 + 2 * (d & 1)
                a(f"v_perm_b32 v{tl}, v{r1+d}, v{r0+d}, s{sSELLO}")
                a(f"v_perm_b32 v{th}, v{r1+d}, v{r0+d}, s{sSELHI}")
                for b in range(2):
                    a(f"v_dot2_f32_bf16 v{hA+b*8+2*d}, v{tl}, v{xs(b,p)}, v{hA+b*8+2*d}")
                    a(f"v_dot2_f32_bf16 v{hA+b*8+2*d+1}, v{th}, v{xs(b,p)}, v{hA+b*8+2*d+1}")
    a.wait_vm("hx")
    for ph in range(4):
        a.wait_vm(f"w1_{ph}")
        h_compute(ph % 3, lambda b, p, ph=ph: hX + b * 16 + ph * 4 + p)
        if ph == 0:
            h_issue_w1(3)
        else:
            h_issue_w2(ph - 1)
    a(f"v_lshlrev_b32 v{hT}, 8, v{hR}")
    a(f"v_lshl_add_u32 v{hT}, v{hC}, 5, v{hT}")
    a(f"v_add_u32 v{hT}, {L_H}, v{hT}")
    a("s_nop 2")
    for b in range(2):
        a(f"ds_write_b128 v{hT}, v[{hA+b*8}:{hA+b*8+3}] offset:{b*128}")
        a(f"ds_write_b128 v{hT}, v[{hA+b*8+4}:{hA+b*8+7}] offset:{b*128 + 16}")
    a(f"v_lshlrev_b32 v{hT+1}, 2, v0")
    a(f"v_add_u32 v{hT+1}, {L_H}, v{hT+1}")
    a("s_waitcnt lgkmcnt(0)")
    for rr in range(16):
        a(f"ds_read_b32 v{hX+rr}, v{hT+1} offset:{rr*256}")
    a("s_waitcnt lgkmcnt(0)")
    for st in (1, 2, 4, 8):
        for i in range(0, 16, 2 * st):
            a(f"v_add_f32 v{hX+i}, v{hX+i}, v{hX+i+st}")
    hv, e = hX, hX + 1
    a(f"v_cvt_pk_bf16_f32 v{hv}, v{hv}, v{hv}")
    a(f"v_lshlrev_b32 v{hv}, 16, v{hv}")
    a(f"v_mul_f32 v{e}, 0x{f2u(-LOG2E):08x}, v{hv}")
    a(f"v_exp_f32 v{e}, v{e}")
    a("s_nop 0")
    a(f"v_add_f32 v{e}, 1.0, v{e}")
    a(f"v_rcp_f32 v{e}, v{e}")
    a("s_nop 0")
    a(f"v_mul_f32 v{hv}, v{hv}, v{e}")
    a(f"v_cvt_pk_bf16_f32 v{hv}, v{hv}, v{hv}")
    a(f"v_lshlrev_b32 v{hT+1}, 1, v0")
    a(f"v_add_u32 v{hT+1}, {L_H+4096}, v{hT+1}")
    a(f"ds_write_b16 v{hT+1}, v{hv}")
    a(f"v_mov_b32 v{hT+1}, {L_H+4096}")
    a("s_waitcnt lgkmcnt(0)")
    for k in range(8):
        a(f"ds_read_b128 v[{hX+4*k}:{hX+4*k+3}], v{hT+1} offset:{16*k}")
    for i in range(16):
        a(f"v_mov_b32 v{hA+i}, 0")
    a("s_waitcnt lgkmcnt(0)")
    for ph in range(4):
        a.wait_vm(f"w2_{ph}")
        h_compute((ph + 4) % 3, lambda b, p, ph=ph: hX + b * 16 + ph * 4 + p)
        if ph == 0:
            h_issue_w2(3)
    fK = vR + 64
    a("s_nop 2")
    for i in range(16):
        a(f"v_mov_b32 v{fK+i}, v{hA+i}")
    a(f"v_lshrrev_b32 v{fK+16}, 1, v0")
    a(f"v_lshlrev_b32 v{fK+16}, 12, v{fK+16}")
    a(f"v_and_b32 v{fK+17}, 1, v0")
    a(f"v_lshl_add_u32 v{fK+16}, v{fK+17}, 5, v{fK+16}")
    a("s_mov_b32 s84, 1")
    a.label("L1_yexit")
    if not ystamp: STAMP(2)
    wo_flag_wait()
    wperm()
    a("s_branch L1_comb")

    a.q = []
    a.label("L1_pathA")
    a(f"s_setprio {oprio}")
    vX = vW
    a(f"v_lshlrev_b32 v{vT}, 6, v{vG}")
    a("s_lshl_b32 s61, s63, 10")
    a("s_lshl_b32 s69, s3, 8")
    a("s_add_u32 s61, s61, s69")
    for k in range(4):
        a.vm(f"buffer_load_dwordx4 v[{vX+4*k}:{vX+4*k+3}], v{vT}, s[{SX}:{SX+3}], s61 offen offset:{16*k}", "x")
    a(f"v_lshlrev_b32 v{vT+1}, 4, v{vCc}")
    a(f"v_lshl_add_u32 v{vT+1}, v{vG}, 18, v{vT+1}")
    a(f"s_add_u32 s61, s{sB0}, s3")
    a("s_mov_b32 s15, s61")
    a("s_lshl_b32 s83, s3, 20")
    a("s_lshl_b32 s69, s62, 8")
    a("s_add_u32 s83, s83, s69")
    a("s_lshl_b32 s70, s3, 15")
    a(f"s_add_u32 s70, s70, {L_W}")
    ntile = 0
    for i in range(32):
        a(f"s_add_u32 m0, s70, {i*1024}")
        a(f"s_add_u32 s61, s83, {i*8192}")
        if "wq" in abl and i % 8 != 7:
            a.q.append(f"wq{i}"); a.q.pop()
        else:
            a.vm(f"buffer_load_dwordx4 v{vT+1}, s[{SWQ}:{SWQ+3}], s61 offen lds", f"wq{i}")
        if i == 3:
            lds_init_barrier()
        if (i + 1) % wq_chunk == 0 and ntile < NB:
            tau_to_off(15, sOFF + ntile)
            a("s_add_u32 s15, s15, 4")
            issue_K(ntile, ntile); issue_V(ntile, ntile); ntile += 1
    while ntile < NB:
        tau_to_off(15, sOFF + ntile)
        a("s_add_u32 s15, s15, 4")
        issue_K(ntile, ntile); issue_V(ntile, ntile); ntile += 1
    acc = [vS[0] + i for i in range(4)] + [vS[1] + i for i in range(4)]
    for i in range(8):
        a(f"v_mov_b32 v{acc[i]}, 0")
    vWL = vT + 6
    a(f"v_lshlrev_b32 v{vWL}, 4, v0")
    a(f"v_add_u32 v{vWL}, s70, v{vWL}")
    def wqr(p): return vW + 16 + 8 * (p & 3)
    saved_q = None
    def wq_read(p):
        a.wait_vm("x", f"wq{2*p+1}")
        r = wqr(p)
        a(f"ds_read_b128 v[{r}:{r+3}], v{vWL} offset:{2*p*1024}")
        a(f"ds_read_b128 v[{r+4}:{r+7}], v{vWL} offset:{(2*p+1)*1024}")
    for p in range(3):
        wq_read(p)
    for p in range(16):
        rem = min(16 - 1 - p, 2)
        a(f"s_waitcnt lgkmcnt({2*rem})")
        r0 = wqr(p); r1 = r0 + 4
        for d in range(4):
            tl, th = vT + 2 + 2 * (d & 1), vT + 3 + 2 * (d & 1)
            a(f"v_perm_b32 v{tl}, v{r1+d}, v{r0+d}, s{sSELLO}")
            a(f"v_perm_b32 v{th}, v{r1+d}, v{r0+d}, s{sSELHI}")
            a(f"v_dot2_f32_bf16 v{acc[2*d]}, v{tl}, v{vX+p}, v{acc[2*d]}")
            a(f"v_dot2_f32_bf16 v{acc[2*d+1]}, v{th}, v{vX+p}, v{acc[2*d+1]}")
        if p + 3 < 16:
            wq_read(p + 3)
    reduce_scatter8(acc)
    a(f"ds_write_b64 v{vLD}, v[{acc[0]}:{acc[1]}] offset:{L_QP}")
    a("s_waitcnt lgkmcnt(0)")
    a("s_mov_b64 exec, 1")
    a(f"ds_add_u32 v{vCA}, v{vC1} offset:{L_CNT+4}")
    a("s_mov_b64 exec, -1")
    q_wait()
    qfrag()
    a("s_setprio 0")
    STAMP(1)
    if clk: a("s_memtime s[16:17]")
    if stamp:
        a("s_lshl_b32 s61, s3, 9")
        a(f"v_mov_b32 v{vLG}, s61")
        a("s_memrealtime s[100:101]")
    grab_issue()
    wo_setup()
    npeel = -(-32 // (U * wo_per_step))
    def patof(seq):
        if seq < NB: return "c"
        if seq < npeel * U: return kpeel[seq % len(kpeel)]
        return kpat[(seq % U) % len(kpat)]
    assert U % len(kpat) == 0
    piece = 0
    for ps_ in range(npeel):
        for k in range(U):
            seq = ps_ * U + k
            buf = k % NB
            a.wait_vm(f"K{seq}")
            qk(KB(buf), vS[0], patof(seq))
            a.wait_vm(f"V{seq}")
            softmax_pv(vS[0], VB(buf))
            a(f"s_cmp_eq_u32 s{sOFF + (k+1) % U}, 0x{OOB:x}")
            a("s_cbranch_scc1 L1_exit")
            grab_resolve(k + NB)
            grab_issue()
            issue_K(seq + NB, buf, patof(seq + NB))
            issue_V(seq + NB, buf)
            for _ in range(wo_per_step):
                if piece < 32:
                    wo_piece(piece, True); piece += 1
    a("s_mov_b32 s82, 1")
    a.label("L1_body")
    for k in range(U):
        buf = k % NB
        a(f"s_waitcnt vmcnt({8*NB-4})")
        qk(KB(buf), vS[0], patof(npeel * U + k))
        a(f"s_waitcnt vmcnt({8*(NB-1)})")
        softmax_pv(vS[0], VB(buf))
        a(f"s_cmp_eq_u32 s{sOFF + (k+1) % U}, 0x{OOB:x}")
        a("s_cbranch_scc1 L1_exit")
        grab_resolve(k + NB)
        grab_issue()
        issue_K(k + NB, buf, patof(npeel * U + k + NB))
        issue_V(k + NB, buf)
    a(f"s_cmp_eq_u32 s{sWP}, 1")
    a("s_cbranch_scc1 L1_body")
    a("s_waitcnt lgkmcnt(0)")
    wo_flag_set()
    wperm()
    a("s_branch L1_body")
    a.label("L1_exit")
    STAMP(2)
    if clk: a("s_memtime s[18:19]")
    a(f"s_cmp_eq_u32 s{sWP}, 1")
    a("s_cbranch_scc1 L1_comb")
    a("s_cmp_eq_u32 s82, 1")
    a("s_cbranch_scc1 L1_wo_issued")
    for n in range(32):
        wo_piece(n, False)
    a.label("L1_wo_issued")
    a("s_waitcnt vmcnt(0) lgkmcnt(0)")
    wo_flag_set()
    wperm()
    a.label("L1_comb")

    x1, x2, MW, f = vT, vT + 1, vT + 2, vT + 3
    a(f"v_mov_b32 v{x1}, v{vM}")
    a(f"v_mov_b32 v{x2}, v{vM}")
    a("s_nop 1")
    a(f"v_permlane32_swap_b32 v{x1}, v{x2}")
    a(f"v_max_f32 v{x1}, v{x1}, v{x2}")
    a(f"v_mov_b32 v{x2}, v{x1}")
    a("s_nop 1")
    a(f"v_permlane16_swap_b32 v{x1}, v{x2}")
    a(f"v_max_f32 v{MW}, v{x1}, v{x2}")
    a(f"v_sub_f32 v{f}, v{vM}, v{MW}")
    a(f"v_mul_f32 v{f}, s{sC}, v{f}")
    a(f"v_exp_f32 v{f}, v{f}")
    a("s_nop 0")
    a(f"v_mul_f32 v{x1}, v{f}, v{vL}")
    a(f"v_mul_f32 v{x2}, v{f}, v{vL}")
    for i in range(8):
        a(f"v_mul_f32 v{vO+i}, v{f}, v{vO+i}")
    a(f"v_permlane32_swap_b32 v{x1}, v{x2}")
    a(f"v_add_f32 v{x1}, v{x1}, v{x2}")
    a(f"v_mov_b32 v{x2}, v{x1}")
    a("s_nop 1")
    a(f"v_permlane16_swap_b32 v{x1}, v{x2}")
    a(f"v_add_f32 v{MW+1}, v{x1}, v{x2}")
    reduce_scatter8([vO + i for i in range(8)])
    a(f"ds_write_b64 v{vLD}, v[{vO}:{vO+1}] offset:{L_OP}")
    a("s_lshl_b32 s61, s3, 3")
    a(f"v_mov_b32 v{x1}, s61")
    a(f"ds_write_b64 v{x1}, v[{MW}:{MW+1}] offset:{L_ML}")
    aOP, aPW, aPR, aY = vM, vL, vS[0], vKO
    a(f"v_lshlrev_b32 v{aOP}, 3, v0")
    a("s_lshl_b32 s61, s3, 9")
    a(f"s_add_u32 s61, s61, {L_P}")
    a(f"v_lshlrev_b32 v{aPW}, 2, v0")
    a(f"v_add_u32 v{aPW}, s61, v{aPW}")
    a(f"v_and_b32 v{aPR}, 1, v{vCc}")
    a(f"v_lshlrev_b32 v{aPR}, 8, v{aPR}")
    a(f"v_lshl_add_u32 v{aPR}, v{vG}, 4, v{aPR}")
    a(f"v_add_u32 v{aPR}, s61, v{aPR}")
    a(f"v_and_b32 v{x2}, 2, v{vCc}")
    a(f"v_cmp_eq_u32 s[16:17], 0, v{x2}")
    a(f"v_lshlrev_b32 v{aY}, 2, v{vCc}")
    a(f"v_lshl_add_u32 v{aY}, v{vG}, 13, v{aY}")
    for gg in range(1, 4):
        a(f"v_cmp_eq_u32 s[{16+2*gg}:{17+2*gg}], {gg}, v{vG}")
    a("s_lshl_b32 s61, s63, 5")
    a("s_lshl_b32 s69, s3, 2")
    a("s_add_u32 s61, s61, s69")
    a("s_lshl_b32 s61, s61, 13")
    a("s_lshl_b32 s69, s62, 2")
    a("s_add_u32 s69, s69, s64")
    a("s_lshl_b32 s70, s69, 6")
    a("s_add_u32 s60, s61, s70")
    a("s_waitcnt vmcnt(0)")
    for i in range(16):
        a(f"v_mov_b32 v{vR+16+i}, 0")
    a("s_waitcnt lgkmcnt(0)")
    a("s_barrier")
    if ystamp:
        a("s_cmp_ge_u32 s3, 4"); a("s_cbranch_scc1 L1_ns4")
    STAMP(4)
    if ystamp: a.label("L1_ns4")
    a(f"v_mov_b32 v{x1}, 0")
    for i in range(4):
        a(f"ds_read_b128 v[{vQ+4*i}:{vQ+4*i+3}], v{x1} offset:{L_ML + 16*i}")
    op = [vR + 2 * w for w in range(8)]
    for w in range(8):
        a(f"ds_read_b64 v[{op[w]}:{op[w]+1}], v{aOP} offset:{L_OP + w*512}")
    a("s_waitcnt lgkmcnt(8)")
    Mt, Lt = vT + 4, vT + 5
    a(f"v_max3_f32 v{Mt}, v{vQ}, v{vQ+2}, v{vQ+4}")
    a(f"v_max3_f32 v{Mt}, v{vQ+6}, v{vQ+8}, v{Mt}")
    a(f"v_max3_f32 v{Mt}, v{vQ+10}, v{vQ+12}, v{Mt}")
    a(f"v_max_f32 v{Mt}, v{vQ+14}, v{Mt}")
    for w in range(8):
        a(f"v_sub_f32 v{vQ+2*w}, v{vQ+2*w}, v{Mt}")
    for w in range(8):
        a(f"v_mul_f32 v{vQ+2*w}, s{sC}, v{vQ+2*w}")
    for w in range(8):
        a(f"v_exp_f32 v{vQ+2*w}, v{vQ+2*w}")
    a("s_waitcnt lgkmcnt(0)")
    o0, o1, hi, lo = vT + 6, vT + 7, vT + 8, vT + 9
    a(f"v_mul_f32 v{o0}, v{vQ}, v{op[0]}")
    a(f"v_mul_f32 v{o1}, v{vQ}, v{op[0]+1}")
    for w in range(1, 8):
        a(f"v_fma_f32 v{o0}, v{vQ+2*w}, v{op[w]}, v{o0}")
        a(f"v_fma_f32 v{o1}, v{vQ+2*w}, v{op[w]+1}, v{o1}")
    a(f"v_cvt_pk_bf16_f32 v{hi}, v{o0}, v{o1}")
    a(f"v_lshlrev_b32 v{x1}, 16, v{hi}")
    a(f"v_and_b32 v{x2}, 0xffff0000, v{hi}")
    a(f"v_sub_f32 v{o0}, v{o0}, v{x1}")
    a(f"v_sub_f32 v{o1}, v{o1}, v{x2}")
    a(f"v_cvt_pk_bf16_f32 v{lo}, v{o0}, v{o1}")
    a(f"ds_write_b32 v{aPW}, v{hi}")
    a(f"ds_write_b32 v{aPW}, v{lo} offset:256")
    a(f"v_mul_f32 v{Lt}, v{vQ}, v{vQ+1}")
    for w in range(1, 8):
        a(f"v_fma_f32 v{Lt}, v{vQ+2*w}, v{vQ+2*w+1}, v{Lt}")
    a("s_waitcnt lgkmcnt(0)")
    AF = vR + 16
    a("s_mov_b64 exec, s[16:17]")
    for ks in range(4):
        a(f"ds_read_b128 v[{AF+4*ks}:{AF+4*ks+3}], v{aPR} offset:{ks*64}")
    a("s_mov_b64 exec, -1")
    DA = vR + 32
    for ks in range(4):
        a(f"s_waitcnt lgkmcnt({3-ks})")
        for ct in range(4):
            c = "0" if ks == 0 else f"v[{DA+4*ct}:{DA+4*ct+3}]"
            a(f"v_mfma_f32_16x16x32_bf16 v[{DA+4*ct}:{DA+4*ct+3}], v[{AF+4*ks}:{AF+4*ks+3}], v[{BF(ks,ct)}:{BF(ks,ct)+3}], {c}")
    a("s_nop 7")
    ac = [vO + i for i in range(4)]
    for ct in range(4):
        a(f"v_add_f32 v{ac[ct]}, v{DA+4*ct}, v{DA+4*ct+1}")
    for gg in range(1, 4):
        a(f"v_cndmask_b32 v{ac[0]}, v{ac[0]}, v{ac[gg]}, s[{16+2*gg}:{17+2*gg}]")
    a(f"buffer_store_dword v{ac[0]}, v{aY}, s[{SWS}:{SWS+3}], s60 offen")
    if ystamp:
        a("s_cmp_ge_u32 s3, 4"); a("s_cbranch_scc1 L1_ns3")
    STAMP(3)
    if ystamp: a.label("L1_ns3")
    if clk:
        a("s_waitcnt lgkmcnt(0)")
        a("s_mov_b32 s98, s16"); a("s_mov_b32 s100, s18")
    STAMP_STORE(6, ["s_lshl_b32 s61, s2, 4", "s_add_u32 s61, s61, s3", "s_lshl_b32 s61, s61, 5"], SWS, vQ)
    if stamp:
        a("s_cmp_ge_u32 s3, 4")
        a("s_cbranch_scc1 L1_nolog")
        a("s_lshl_b32 s61, s3, 9")
        a(f"v_lshlrev_b32 v{vQ}, 3, v0")
        a(f"v_add_u32 v{vQ+1}, s61, v{vQ}")
        a(f"ds_read_b64 v[{vQ+2}:{vQ+3}], v{vQ+1} offset:{L_LOG}")
        a("s_lshl_b32 s70, s2, 11")
        a("s_add_u32 s61, s61, s70")
        a(f"s_add_u32 s61, s61, {WS_ST + 262144}")
        a("s_waitcnt lgkmcnt(0)")
        a(f"buffer_store_dwordx2 v[{vQ+2}:{vQ+3}], v{vQ}, s[{SWS}:{SWS+3}], s61 offen")
        a.label("L1_nolog")
    a("s_cmp_eq_u32 s84, 1")
    a("s_cbranch_scc0 L1_noffn")
    a("s_lshl_b32 s61, s85, 6")
    a(f"s_add_u32 s61, s61, {WS_BP}")
    a(f"s_add_u32 s70, s61, {32*64*64}")
    for b in range(2):
        so = "s61" if b == 0 else "s70"
        a(f"buffer_store_dwordx4 v[{fK+b*8}:{fK+b*8+3}], v{fK+16}, s[{SWS}:{SWS+3}], {so} offen")
        a(f"buffer_store_dwordx4 v[{fK+b*8+4}:{fK+b*8+7}], v{fK+16}, s[{SWS}:{SWS+3}], {so} offen offset:16")
    a.label("L1_noffn")
    a("s_cmp_lg_u32 s3, 0")
    a("s_cbranch_scc1 L1_done")
    a("s_lshl_b32 s61, s63, 7")
    a("s_add_u32 s61, s61, s69")
    a("s_lshl_b32 s61, s61, 3")
    a(f"s_add_u32 s61, s61, {WS_ML}")
    a(f"v_mov_b32 v{x1}, 0")
    a("v_cmp_eq_u32 vcc, 0, v0")
    a("s_and_saveexec_b64 s[70:71], vcc")
    assert Mt % 2 == 0 and Lt == Mt + 1
    a(f"buffer_store_dwordx2 v[{Mt}:{Lt}], v{x1}, s[{SWS}:{SWS+3}], s61 offen")
    a.label("L1_done")
    a("s_endpgm")

    a.q = []
    a.raw(".globl fin_kernel")
    a.raw(".p2align 8")
    a.raw(".type fin_kernel,@function")
    a.label("fin_kernel")
    a("s_cmp_ge_u32 s2, 64")
    a("s_cbranch_scc1 L2_done")
    STAMP(0)
    a("s_load_dwordx2 s[4:5], s[0:1], 0")
    a("s_load_dwordx8 s[20:27], s[0:1], 64")
    a("v_lshrrev_b32 v1, 6, v0")
    a("v_and_b32 v2, 15, v0")
    a("v_lshrrev_b32 v3, 4, v0")
    a("v_readfirstlane_b32 s3, v1")
    a("s_lshr_b32 s63, s2, 5")
    a("v_lshlrev_b32 v4, 2, v2")
    a("v_lshl_add_u32 v4, v3, 9, v4")
    a("v_lshlrev_b32 v5, 6, v3")
    a("v_lshlrev_b32 v6, 8, v3")
    a("v_lshl_add_u32 v6, v2, 2, v6")
    a("v_lshlrev_b32 v7, 2, v0")
    a("s_lshl_b32 s60, s2, 13")
    a("s_lshl_b32 s61, s63, 10")
    a(f"s_add_u32 s62, s61, {WS_ML}")
    a("s_lshl_b32 s64, s2, 12")
    a(f"s_add_u32 s64, s64, {WS_BP}")
    a("s_waitcnt lgkmcnt(0)")
    srd(SWS, 26, WS_BYTES)
    srd(SX, 4, 2048)
    srd(32, 20, 1024)
    srd(36, 22, 2048)
    ML = 24
    for i in range(4):
        a.vm(f"buffer_load_dwordx4 v[{ML+4*i}:{ML+4*i+3}], v5, s[{SWS}:{SWS+3}], s62 offen offset:{i*16}", "ml")
    Y = 16
    for i in range(8):
        a.vm(f"buffer_load_dword v{Y+i}, v4, s[{SWS}:{SWS+3}], s60 offen offset:{i*64}", "y")
    BP = 40
    for i in range(4):
        a(f"v_mov_b32 v{BP+i}, 0")
    a("v_cmp_gt_u32 vcc, 14, v3")
    a("s_and_saveexec_b64 s[70:71], vcc")
    for i in range(4):
        a.vm(f"buffer_load_dword v{BP+i}, v6, s[{SWS}:{SWS+3}], s64 offen offset:{i*64}", "bp")
    a("s_mov_b64 exec, s[70:71]")
    a.vm(f"buffer_load_dword v54, v7, s[{SX}:{SX+3}], s61 offen", "g")
    a.vm("buffer_load_dword v55, v7, s[32:35], 0 offen", "g")
    sC2 = 67
    a(f"s_mov_b32 s{sC2}, 0x{f2u(LOG2E if mimic else LOG2E * SCALE):08x}")
    a.wait_vm("ml")
    for hh in range(2):
        B = ML + hh * 8
        Mx, Ls = 8 + hh * 2, 9 + hh * 2
        a(f"v_max3_f32 v{Mx}, v{B}, v{B+2}, v{B+4}")
        a(f"v_max_f32 v{Mx}, v{B+6}, v{Mx}")
        for s_ in range(4):
            a(f"v_sub_f32 v{B+2*s_}, v{B+2*s_}, v{Mx}")
        for s_ in range(4):
            a(f"v_mul_f32 v{B+2*s_}, s{sC2}, v{B+2*s_}")
        for s_ in range(4):
            a(f"v_exp_f32 v{B+2*s_}, v{B+2*s_}")
        a("s_nop 0")
        a(f"v_mul_f32 v{Ls}, v{B}, v{B+1}")
        for s_ in range(1, 4):
            a(f"v_fma_f32 v{Ls}, v{B+2*s_}, v{B+2*s_+1}, v{Ls}")
        a(f"v_rcp_f32 v{Ls}, v{Ls}")
    a.wait_vm("y")
    for hh in range(2):
        B = ML + hh * 8
        Mx = 8 + hh * 2
        a(f"v_mul_f32 v{Mx}, v{B}, v{Y+hh*4}")
        for s_ in range(1, 4):
            a(f"v_fma_f32 v{Mx}, v{B+2*s_}, v{Y+hh*4+s_}, v{Mx}")
    a("v_mul_f32 v12, v8, v9")
    a("v_fma_f32 v12, v10, v11, v12")
    a.wait_vm("bp")
    a(f"v_add_f32 v13, v{BP}, v{BP+1}")
    a(f"v_add_f32 v14, v{BP+2}, v{BP+3}")
    a("v_add_f32 v13, v13, v14")
    a.wait_vm("g")
    a("v_lshlrev_b32 v56, 16, v54")
    a("v_and_b32 v57, 0xffff0000, v54")
    a("v_lshlrev_b32 v58, 16, v55")
    a("v_and_b32 v59, 0xffff0000, v55")
    a("v_mul_f32 v56, v56, v58")
    a("v_mul_f32 v57, v57, v59")
    a("v_cvt_pk_bf16_f32 v56, v56, v57")
    a("v_lshlrev_b32 v57, 16, v56")
    a("v_and_b32 v56, 0xffff0000, v56")
    a("v_add_f32 v14, v56, v57")
    a("v_permlane32_swap_b32 v12, v13")
    a("v_add_f32 v12, v12, v13")
    a("v_mov_b32 v13, v12")
    a("v_mov_b32 v15, v14")
    a("s_nop 0")
    a("v_permlane16_swap_b32 v12, v13")
    a("v_permlane32_swap_b32 v14, v15")
    a("v_add_f32 v12, v12, v13")
    a("v_add_f32 v14, v14, v15")
    a("v_mov_b32 v15, v14")
    a("s_nop 1")
    a("v_permlane16_swap_b32 v14, v15")
    a("v_add_f32 v14, v14, v15")
    for rr in (8, 4, 2, 1):
        a("s_nop 1")
        a(f"v_add_f32_dpp v14, v14, v14 row_ror:{rr} row_mask:0xf bank_mask:0xf")
    a("v_and_b32 v4, 63, v0")
    a("v_lshrrev_b32 v5, 5, v4")
    a("v_lshlrev_b32 v5, 6, v5")
    a("v_lshl_add_u32 v5, v2, 2, v5")
    a("s_lshl_b32 s61, s3, 7")
    a("v_add_u32 v5, s61, v5")
    a("ds_write_b32 v5, v12")
    a("s_lshl_b32 s61, s3, 2")
    a("v_mov_b32 v6, s61")
    a("ds_write_b32 v6, v14 offset:512")
    a("s_waitcnt lgkmcnt(0)")
    a("s_barrier")
    a("s_cmp_lg_u32 s3, 0")
    a("s_cbranch_scc1 L2_done")
    a("v_lshlrev_b32 v5, 2, v2")
    for w in range(4):
        a(f"ds_read_b32 v{16+w}, v5 offset:{w*128}")
        a(f"ds_read_b32 v{20+w}, v5 offset:{w*128+64}")
    a("v_mov_b32 v6, 0")
    a("ds_read_b128 v[24:27], v6 offset:512")
    a("s_waitcnt lgkmcnt(0)")
    a("v_add_f32 v16, v16, v17"); a("v_add_f32 v18, v18, v19"); a("v_add_f32 v16, v16, v18")
    a("v_add_f32 v20, v20, v21"); a("v_add_f32 v22, v22, v23"); a("v_add_f32 v20, v20, v22")
    a("v_add_f32 v24, v24, v25"); a("v_add_f32 v26, v26, v27"); a("v_add_f32 v24, v24, v26")
    def rbf(r):
        a(f"v_cvt_pk_bf16_f32 v{r}, v{r}, v{r}")
        a(f"v_lshlrev_b32 v{r}, 16, v{r}")
    rbf(16); rbf(20); rbf(24)
    a(f"v_mul_f32 v24, 0x{f2u(-LOG2E):08x}, v24")
    a("v_exp_f32 v24, v24")
    a("s_nop 0")
    a("v_add_f32 v24, 1.0, v24")
    a("v_rcp_f32 v24, v24")
    a("s_nop 0")
    rbf(24)
    a("v_sub_f32 v25, 1.0, v24")
    rbf(25)
    a("v_mul_f32 v16, v24, v16"); rbf(16)
    a("v_mul_f32 v20, v25, v20"); rbf(20)
    a("v_add_f32 v16, v16, v20")
    a("v_cvt_pk_bf16_f32 v16, v16, v16")
    a("s_lshl_b32 s61, s2, 5")
    a("v_lshlrev_b32 v5, 1, v2")
    a("v_cmp_gt_u32 vcc, 16, v0")
    a("s_and_saveexec_b64 s[70:71], vcc")
    a("buffer_store_short v16, v5, s[36:39], s61 offen")
    STAMP(1)
    STAMP_STORE(2, ["s_lshl_b32 s61, s2, 4", "s_add_u32 s61, s61, 131072"], SWS, 40)
    if dbg:
        a("s_cmp_lg_u32 s2, 0")
        a("s_cbranch_scc1 L2_done")
        a("v_lshrrev_b32 v30, 2, v0")
        a("v_mul_u32_u24 v30, 85*512, v30")
        a("v_and_b32 v31, 3, v0")
        a("v_lshl_add_u32 v30, v31, 2, v30")
        a(f"s_mov_b32 s61, {WS_ST}")
        a(f"buffer_load_dword v32, v30, s[{SWS}:{SWS+3}], s61 offen")
        a("s_mov_b32 s28, s24"); a("s_mov_b32 s29, s25"); a("s_mov_b32 s30, 256"); a("s_mov_b32 s31, 0x00020000")
        a("v_lshlrev_b32 v33, 2, v0")
        a("s_waitcnt vmcnt(0)")
        a("v_cmp_eq_u32 vcc, 12, v0")
        a("v_mov_b32 v34, s90")
        a("s_nop 1")
        a("v_cndmask_b32 v32, v32, v34, vcc")
        a("v_cmp_eq_u32 vcc, 13, v0")
        a("v_mov_b32 v34, s92")
        a("s_nop 1")
        a("v_cndmask_b32 v32, v32, v34, vcc")
        a("buffer_store_dword v32, v33, s[28:31], 0 offen")
    a.label("L2_done")
    a("s_endpgm")

    a.raw('.section .rodata,"a"')
    def kd(name, nv):
        a.raw(".p2align 6")
        a.raw(f".amdhsa_kernel {name}")
        a.raw(f"  .amdhsa_next_free_vgpr {nv}")
        a.raw("  .amdhsa_next_free_sgpr 102")
        a.raw(f"  .amdhsa_accum_offset {(nv+3)//4*4}")
        a.raw("  .amdhsa_group_segment_fixed_size 0")
        a.raw("  .amdhsa_kernarg_size 96")
        a.raw("  .amdhsa_user_sgpr_count 2")
        a.raw("  .amdhsa_user_sgpr_kernarg_segment_ptr 1")
        a.raw("  .amdhsa_system_sgpr_workgroup_id_x 1")
        a.raw(".end_amdhsa_kernel")
    kd("attn_kernel", NV1)
    kd("fin_kernel", 64)
    return "\n".join(a.L) + "\n"

if __name__ == "__main__":
    import argparse
    ap = argparse.ArgumentParser()
    ap.add_argument("-o", default=f"cdna_kernels/{KN}.s")
    ap.add_argument("--pol_kv", default="nt")
    ap.add_argument("--pol_w", default="")
    ap.add_argument("--nb", type=int, default=4)
    ap.add_argument("--nt", type=int, default=4)
    ap.add_argument("--mimic", action="store_true")
    ap.add_argument("--stamp", action="store_true")
    ap.add_argument("--ypace", type=int, default=2)
    ap.add_argument("--wops", type=int, default=2)
    ap.add_argument("--kpat", default="mc")
    ap.add_argument("--kpeel", default="c")
    ap.add_argument("--dbg", action="store_true")
    ap.add_argument("--oprio", type=int, default=3)
    ap.add_argument("--yprio", type=int, default=2)
    ap.add_argument("--wqc", type=int, default=8)
    ap.add_argument("--r0", type=int, default=30)
    ap.add_argument("--abl", default="")
    ap.add_argument("--ystamp", action="store_true")
    ap.add_argument("--clk", action="store_true")
    args = ap.parse_args()
    open(args.o, "w").write(gen(pol_kv=args.pol_kv, pol_w=args.pol_w, NB=args.nb, NT=args.nt, mimic=args.mimic,
                                stamp=args.stamp, ypace=args.ypace, wo_per_step=args.wops, kpat=args.kpat, kpeel=args.kpeel, dbg=args.dbg, oprio=args.oprio, yprio=args.yprio, wq_chunk=args.wqc, R0=args.r0, abl=args.abl, ystamp=args.ystamp, clk=args.clk))
```

```python
import sys, math, struct

KN = "gated_mix__mha_block_cached__dense_activation_silu__decode"

def f2u(x):
    return struct.unpack("<I", struct.pack("<f", x))[0]

class Asm:
    def __init__(self):
        self.L = []
        self.q = []
    def __call__(self, s):
        self.L.append("  " + s)
    def label(self, s):
        self.L.append(s + ":")
    def raw(self, s):
        self.L.append(s)
    def vm(self, s, tag):
        self.L.append("  " + s)
        self.q.append(tag)
    def wait_vm(self, *tags):
        last = -1
        for i, t in enumerate(self.q):
            if t in tags:
                last = i
        if last < 0:
            return
        n = len(self.q) - 1 - last
        if n > 63:
            n = 63
            last = len(self.q) - 1 - n
        self.L.append(f"  s_waitcnt vmcnt({n})")
        self.q = self.q[last + 1:]

WS_Y = 0
WS_ML = 512 * 1024
WS_BP = 1024 * 1024
WS_ST = 4 * 1024 * 1024
WS_BYTES = 536870912

LOG2E = 1.4426950408889634
SCALE = 128 ** -0.5
OOB = 0x40000000

def gen(pol_kv="nt", pol_w="", NB=4, NT=4, mimic=False, stamp=False, ypace=2, wo_per_step=2, kpat="mc", kpeel="c", dbg=False, oprio=3, yprio=2, wq_chunk=8, R0=30, abl="", ystamp=False, clk=False, dynffn=True):
    a = Asm()
    D = NB - 1
    U = {2: 4, 3: 6, 4: 4}[NB]
    def STAMP(k):
        if stamp or dbg:
            a(f"s_memrealtime s[{90+2*k}:{91+2*k}]")
    def STAMP_STORE(n, base_expr_lines, srd, vtmp):
        if not (stamp or dbg): return
        a("s_waitcnt lgkmcnt(0)")
        for l in base_expr_lines: a(l)
        a(f"s_add_u32 s61, s61, {WS_ST}")
        for k in range(n):
            a(f"v_mov_b32 v{vtmp+1+k}, s{90+2*k}")
        a(f"v_mov_b32 v{vtmp}, 0")
        for k in range(n):
            a(f"buffer_store_dword v{vtmp+1+k}, v{vtmp}, s[{srd}:{srd+3}], s61 offen offset:{4*k}")

    hdr = open(f"cdna_kernels/{KN}.s.ref").read().split("; Override launch")[0]
    a.raw(hdr.rstrip())
    a.raw("; @launch kernel=attn_kernel grid=(256,1,1) block=(512,1,1) lds=152064")
    a.raw("; @launch kernel=fin_kernel grid=(64,1,1) block=(256,1,1) lds=1024")
    a.raw('.amdgcn_target "amdgcn-amd-amdhsa--gfx950"')
    a.raw(".text")

    a.raw(".globl attn_kernel")
    a.raw(".p2align 8")
    a.raw(".type attn_kernel,@function")
    a.label("attn_kernel")
    a("s_cmp_ge_u32 s2, 256")
    a("s_cbranch_scc1 L1_done")
    STAMP(0)
    a("s_load_dwordx16 s[4:19], s[0:1], 0")
    a("s_load_dwordx8 s[20:27], s[0:1], 64")
    a("v_lshrrev_b32 v1, 6, v0")
    a("v_and_b32 v0, 63, v0")
    a("s_nop 0")
    a("v_readfirstlane_b32 s3, v1")
    sSELLO, sSELHI, sC = 65, 66, 67
    a(f"s_mov_b32 s{sSELLO}, 0x05040100")
    a(f"s_mov_b32 s{sSELHI}, 0x07060302")
    if mimic:
        a(f"s_mov_b32 s{sC}, 0x{f2u(LOG2E):08x}")
        a(f"s_mov_b32 s68, 0x{f2u(SCALE):08x}")
    else:
        a(f"s_mov_b32 s{sC}, 0x{f2u(LOG2E * SCALE):08x}")
    a("s_and_b32 s60, s2, 7")
    a("s_lshr_b32 s61, s2, 3")
    a("s_and_b32 s62, s61, 3")
    a("s_lshl_b32 s62, s62, 3")
    a("s_add_u32 s62, s62, s60")
    a("s_lshr_b32 s61, s61, 2")
    a("s_lshr_b32 s63, s61, 2")
    a("s_and_b32 s64, s61, 3")

    vG, vCc, vKO, vVO = 1, 2, 3, 4
    vM, vL, vLD = 5, 6, 7
    vT = 8
    vQ = 24
    vO = 40
    vS = [48, 52]
    vQc = 52
    vR = 56
    vW = vR + 128
    vCA, vC1 = vW + 65, vW + 66
    NV1 = vW + 70
    assert NV1 <= 256 and NB <= 4 and NT <= 6
    def KB(buf): return vR + buf * 32
    def VB(buf): return vR + buf * 32 + 16

    L_QP, L_QB, L_OP, L_ML, L_CNT, L_P = 0, 2048, 4096, 8192, 8328, 8448
    L_W = 16384

    a(f"v_mov_b32 v{vCA}, 0")
    a(f"v_mov_b32 v{vC1}, 1")
    a(f"v_lshrrev_b32 v{vG}, 4, v0")
    a(f"v_and_b32 v{vCc}, 15, v0")
    a(f"v_lshlrev_b32 v{vKO}, 8, v{vCc}")
    a(f"v_lshl_add_u32 v{vKO}, v{vG}, 4, v{vKO}")
    a(f"v_lshlrev_b32 v{vVO}, 4, v{vCc}")
    a(f"v_lshl_add_u32 v{vVO}, v{vG}, 10, v{vVO}")
    a(f"v_and_b32 v{vT}, 1, v{vG}")
    a(f"v_lshrrev_b32 v{vT+1}, 1, v{vG}")
    a(f"v_lshlrev_b32 v{vLD}, 5, v{vCc}")
    a(f"v_lshl_add_u32 v{vLD}, v{vT}, 3, v{vLD}")
    a(f"v_lshl_add_u32 v{vLD}, v{vT+1}, 4, v{vLD}")
    a("s_lshl_b32 s61, s3, 9")
    a(f"v_add_u32 v{vLD}, s61, v{vLD}")
    a("s_lshl_b32 s85, s63, 5")
    a("s_add_u32 s85, s85, s62")
    a("s_lshl_b32 s60, s85, 21")
    a("s_lshl_b32 s71, s3, 14")
    a(f"s_add_u32 s71, s71, {L_W}")
    sFF, sB0 = 88, 89
    a(f"s_mov_b32 s{sB0}, {4*NT}")
    sOFF = 72
    sWP, sTMP = 86, 87
    a(f"s_mov_b32 s{sWP}, 0")
    a("s_mov_b32 s84, 0")
    a("s_mov_b32 s82, 0")
    a("s_waitcnt lgkmcnt(0)")
    def srd(d, p, size):
        a(f"s_mov_b32 s{d}, s{p}")
        a(f"s_mov_b32 s{d+1}, s{p+1}")
        a(f"s_mov_b32 s{d+2}, 0x{size:x}")
        a(f"s_mov_b32 s{d+3}, 0x00020000")
    SX, SWQ, SK, SV, SWO, SWS, SW1, SW2 = 28, 32, 36, 40, 44, 48, 52, 56
    srd(SX, 4, 2048)
    srd(SWQ, 10, 512 * 4096 * 2)
    srd(SK, 6, 128 << 20)
    srd(SV, 8, 128 << 20)
    srd(SWO, 12, 4096 * 512 * 2)
    srd(SWS, 26, WS_BYTES)
    srd(SW1, 16, 512 * 1792 * 2)
    srd(SW2, 18, 1792 * 512 * 2)
    SDBG = 4
    srd(SDBG, 24, 256)
    sR0, sB2, sNTL = 8, 9, 10
    rem = 128 - 4 * R0
    e1 = -(-rem // 3); e2 = -(-(rem - e1) // 2); e3 = rem - e1 - e2
    if not dynffn:
        a("s_cmp_lt_u32 s85, 56")
        a("s_cbranch_scc1 L1_ffngrp")
    a(f"s_mov_b32 s{sR0}, 32"); a(f"s_mov_b32 s{sB2}, 0"); a(f"s_mov_b32 s{sNTL}, 128"); a(f"s_mov_b32 s{sFF}, 0")
    a("s_branch L1_mapdone")
    a.label("L1_ffngrp")
    a(f"s_mov_b32 s{sR0}, {R0}")
    a(f"s_mov_b32 s{sB2}, {4*R0}"); a(f"s_mov_b32 s{sNTL}, {4*(R0+e1)}")
    a("s_cmp_eq_u32 s64, 2")
    a(f"s_cselect_b32 s{sB2}, {4*R0+e1}, s{sB2}"); a(f"s_cselect_b32 s{sNTL}, {4*(R0+e2)}, s{sNTL}")
    a("s_cmp_eq_u32 s64, 3")
    a(f"s_cselect_b32 s{sB2}, {4*R0+e1+e2}, s{sB2}"); a(f"s_cselect_b32 s{sNTL}, {4*(R0+e3)}, s{sNTL}")
    a("s_cmp_eq_u32 s64, 0")
    a(f"s_cselect_b32 s{sNTL}, {4*R0}, s{sNTL}")
    a(f"s_cselect_b32 s{sFF}, 1, 0")
    a.label("L1_mapdone")
    def tau_to_off(src, dst):
        a(f"s_lshr_b32 s12, s{src}, 2")
        a("s_lshl_b32 s13, s12, 2")
        a("s_add_u32 s13, s13, s64")
        a(f"s_sub_u32 s14, s12, s{sR0}")
        a(f"s_add_u32 s14, s14, s{sB2}")
        a(f"s_cmp_lt_u32 s12, s{sR0}")
        a("s_cselect_b32 s13, s13, s14")
        a("s_lshl_b32 s13, s13, 14")
        a(f"s_and_b32 s12, s{src}, 3")
        a("s_lshl_b32 s12, s12, 12")
        a("s_add_u32 s13, s13, s12")
        a("s_add_u32 s13, s13, s60")
        a(f"s_cmp_lt_u32 s{src}, s{sNTL}")
        a(f"s_cselect_b32 s{dst}, s13, 0x{OOB:x}")

    def issue_K(seq, buf, pat="c", slot=None):
        if slot is None: slot = seq % U
        for j in range(4):
            r = KB(buf) + 4 * j
            if pat == "c":
                a.vm(f"buffer_load_dwordx4 v[{r}:{r+3}], v{vVO}, s[{SK}:{SK+3}], s{sOFF + slot} offen offset:{j*256} {pol_kv}", f"K{seq}")
            else:
                a.vm(f"buffer_load_dwordx4 v[{r}:{r+3}], v{vKO}, s[{SK}:{SK+3}], s{sOFF + slot} offen offset:{j*64} {pol_kv}", f"K{seq}")
    def issue_V(seq, buf, slot=None):
        if slot is None: slot = seq % U
        for r_ in range(4):
            r = VB(buf) + 4 * r_
            a.vm(f"buffer_load_dwordx4 v[{r}:{r+3}], v{vVO}, s[{SV}:{SV+3}], s{sOFF + slot} offen offset:{r_*256} {pol_kv}", f"V{seq}")

    vGR = vT + 15
    def grab_issue():
        a("s_mov_b64 exec, 1")
        a(f"ds_add_rtn_u32 v{vGR}, v{vCA}, v{vC1} offset:{L_CNT}")
        a("s_mov_b64 exec, -1")
    L_LOG = 12544
    vLG = NV1 - 1
    def grab_resolve(seq):
        a("s_waitcnt lgkmcnt(0)")
        a(f"v_readfirstlane_b32 s61, v{vGR}")
        if stamp:
            a(f"v_mov_b32 v{vT+12}, s61")
            a(f"v_mov_b32 v{vT+13}, s100")
            a(f"ds_write_b64 v{vLG}, v[{vT+12}:{vT+13}] offset:{L_LOG}")
            a(f"v_add_u32 v{vLG}, 8, v{vLG}")
            a("s_memrealtime s[100:101]")
        tau_to_off(61, sOFF + seq % U)

    def reduce_scatter8(regs):
        a("s_nop 2")
        for i in range(4):
            a(f"v_permlane32_swap_b32 v{regs[i]}, v{regs[i+4]}")
        for i in range(4):
            a(f"v_add_f32 v{regs[i]}, v{regs[i]}, v{regs[i+4]}")
        a("s_nop 1")
        for i in range(2):
            a(f"v_permlane16_swap_b32 v{regs[i]}, v{regs[i+2]}")
        for i in range(2):
            a(f"v_add_f32 v{regs[i]}, v{regs[i]}, v{regs[i+2]}")

    def qfrag():
        a(f"v_lshlrev_b32 v{vT}, 3, v0")
        for w in range(4):
            a(f"ds_read_b64 v[{vQ+2*w}:{vQ+2*w+1}], v{vT} offset:{L_QP + w*512}")
        a("s_lshl_b32 s61, s3, 8")
        a(f"v_lshlrev_b32 v{vT+1}, 2, v0")
        a(f"v_add_u32 v{vT+1}, s61, v{vT+1}")
        a(f"v_lshlrev_b32 v{vT+2}, 4, v{vCc}")
        a(f"v_add_u32 v{vT+2}, s61, v{vT+2}")
        a(f"v_lshlrev_b32 v{vT+4}, 4, v{vG}")
        a(f"v_add_u32 v{vT+4}, s61, v{vT+4}")
        a("s_waitcnt lgkmcnt(0)")
        for (x, y) in ((0, 1), (2, 3), (0, 2)):
            a(f"v_add_f32 v{vQ+2*x}, v{vQ+2*x}, v{vQ+2*y}")
            a(f"v_add_f32 v{vQ+2*x+1}, v{vQ+2*x+1}, v{vQ+2*y+1}")
        a(f"v_cvt_pk_bf16_f32 v{vT+3}, v{vQ}, v{vQ+1}")
        a(f"ds_write_b32 v{vT+1}, v{vT+3} offset:{L_QB}")
        a("s_waitcnt lgkmcnt(0)")
        a(f"ds_read_b128 v[{vQc}:{vQc+3}], v{vT+2} offset:{L_QB}")
        for j in range(4):
            a(f"ds_read_b128 v[{vQ+4*j}:{vQ+4*j+3}], v{vT+4} offset:{L_QB + j*64}")
        a(f"v_mov_b32 v{vM}, 0x{f2u(-3.0e38):08x}")
        a(f"v_mov_b32 v{vL}, 0")
        for i in range(8):
            a(f"v_mov_b32 v{vO+i}, 0")
        a("s_waitcnt lgkmcnt(0)")

    def qk(kreg, S, pat="c"):
        if pat == "m":
            for j in range(4):
                c = "0" if j == 0 else f"v[{S}:{S+3}]"
                a(f"v_mfma_f32_16x16x32_bf16 v[{S}:{S+3}], v[{kreg+4*j}:{kreg+4*j+3}], v[{vQ+4*j}:{vQ+4*j+3}], {c}")
            a("s_nop 7")
            return
        for d in range(4):
            for r in range(4):
                c = "0" if d == 0 else f"v{S+r}"
                a(f"v_dot2_f32_bf16 v{S+r}, v{kreg+4*r+d}, v{vQc+d}, {c}")
        a("s_nop 0")
        for rr in (8, 4, 2, 1):
            for r in range(4):
                a(f"v_add_f32_dpp v{S+r}, v{S+r}, v{S+r} row_ror:{rr} row_mask:0xf bank_mask:0xf")

    mN, al, mc, ps, t1, t2, P01, P23 = vT, vT + 1, vT + 2, vT + 4, vT + 8, vT + 9, vT + 10, vT + 11
    pt = [vT + 12, vT + 13, vT + 14, vT + 3]
    def softmax_pv(S, vreg):
        if mimic:
            for h2 in range(2):
                a(f"v_cvt_pk_bf16_f32 v{t1}, v{S+2*h2}, v{S+2*h2+1}")
                a(f"v_lshlrev_b32 v{S+2*h2}, 16, v{t1}")
                a(f"v_and_b32 v{S+2*h2+1}, 0xffff0000, v{t1}")
                a(f"v_mul_f32 v{S+2*h2}, s68, v{S+2*h2}")
                a(f"v_mul_f32 v{S+2*h2+1}, s68, v{S+2*h2+1}")
                a(f"v_cvt_pk_bf16_f32 v{t1}, v{S+2*h2}, v{S+2*h2+1}")
                a(f"v_lshlrev_b32 v{S+2*h2}, 16, v{t1}")
                a(f"v_and_b32 v{S+2*h2+1}, 0xffff0000, v{t1}")
        a(f"v_max3_f32 v{mN}, v{S}, v{S+1}, v{vM}")
        a(f"v_max3_f32 v{mN}, v{S+2}, v{S+3}, v{mN}")
        a(f"v_sub_f32 v{al}, v{vM}, v{mN}")
        a(f"v_mul_f32 v{mc}, s{sC}, v{mN}")
        a(f"v_mul_f32 v{al}, s{sC}, v{al}")
        for i in range(4):
            a(f"v_fma_f32 v{ps+i}, v{S+i}, s{sC}, -v{mc}")
        a(f"v_exp_f32 v{al}, v{al}")
        for i in range(4):
            a(f"v_exp_f32 v{ps+i}, v{ps+i}")
        a(f"v_mov_b32 v{vM}, v{mN}")
        for i in range(8):
            a(f"v_mul_f32 v{vO+i}, v{al}, v{vO+i}")
        a(f"v_cvt_pk_bf16_f32 v{P01}, v{ps}, v{ps+1}")
        a(f"v_cvt_pk_bf16_f32 v{P23}, v{ps+2}, v{ps+3}")
        a(f"v_add_f32 v{t1}, v{ps}, v{ps+1}")
        a(f"v_add_f32 v{t2}, v{ps+2}, v{ps+3}")
        a(f"v_add_f32 v{t1}, v{t1}, v{t2}")
        a(f"v_fma_f32 v{vL}, v{vL}, v{al}, v{t1}")
        for pr, P in ((0, P01), (2, P23)):
            r0, r1 = vreg + 4 * pr, vreg + 4 * (pr + 1)
            for d in range(4):
                tl, th = pt[2 * (d & 1)], pt[2 * (d & 1) + 1]
                a(f"v_perm_b32 v{tl}, v{r1+d}, v{r0+d}, s{sSELLO}")
                a(f"v_perm_b32 v{th}, v{r1+d}, v{r0+d}, s{sSELHI}")
                a(f"v_dot2_f32_bf16 v{vO+2*d}, v{tl}, v{P}, v{vO+2*d}")
                a(f"v_dot2_f32_bf16 v{vO+2*d+1}, v{th}, v{P}, v{vO+2*d+1}")

    vWA = vW + 67
    def wo_setup():
        a(f"v_lshrrev_b32 v{vWA}, 3, v0")
        a(f"v_lshlrev_b32 v{vWA}, 10, v{vWA}")
        a(f"v_and_b32 v{vT+12}, 7, v0")
        a(f"v_lshl_add_u32 v{vWA}, v{vT+12}, 4, v{vWA}")
        a("s_lshl_b32 s83, s62, 17")
        a("s_lshl_b32 s61, s3, 7")
        a("s_add_u32 s83, s83, s61")
    def wo_piece(n, track):
        sl, i = n >> 4, n & 15
        if "wo" in abl: return
        a(f"s_add_u32 m0, s71, {sl*65536 + i*1024}")
        a(f"s_add_u32 s61, s83, {sl*512 + i*8192}")
        ins = f"buffer_load_dwordx4 v{vWA}, s[{SWO}:{SWO+3}], s61 offen lds {pol_w}"
        if track: a.vm(ins, "wo")
        else: a(ins)
    def wo_flag_set():
        a("s_lshl_b32 s61, s3, 2")
        a(f"v_mov_b32 v{vT+12}, s61")
        a(f"ds_write_b32 v{vT+12}, v{vC1} offset:{L_CNT+8}")
    def wo_flag_wait():
        n = npoll[0]; npoll[0] += 1
        a("s_sub_u32 s61, s3, 4")
        a("s_lshl_b32 s61, s61, 2")
        a(f"v_mov_b32 v{vT+1}, s61")
        a.label(f"L1_poll{n}")
        a(f"ds_read_b32 v{vT}, v{vT+1} offset:{L_CNT+8}")
        a("s_waitcnt lgkmcnt(0)")
        a(f"v_readfirstlane_b32 s61, v{vT}")
        a("s_cmp_eq_u32 s61, 1")
        a(f"s_cbranch_scc1 L1_polled{n}")
        a("s_sleep 8")
        a(f"s_branch L1_poll{n}")
        a.label(f"L1_polled{n}")
    npoll = [0]

    def BF(ks, ct): return vW + (ks * 4 + ct) * 4
    def wperm():
        a(f"v_lshrrev_b32 v{vT+12}, 2, v{vCc}")
        a(f"v_lshl_add_u32 v{vT+12}, v{vG}, 3, v{vT+12}")
        a(f"v_lshlrev_b32 v{vT+12}, 7, v{vT+12}")
        a(f"v_and_b32 v{vT+13}, 3, v{vCc}")
        a(f"v_lshl_add_u32 v{vT+12}, v{vT+13}, 3, v{vT+12}")
        a(f"v_add_u32 v{vT+12}, s71, v{vT+12}")
        for ks in range(4):
            for ct in range(4):
                for hh in range(2):
                    r = BF(ks, ct) + 2 * hh
                    a(f"ds_read_b64_tr_b16 v[{r}:{r+1}], v{vT+12} offset:{(32*ks + 4*hh)*128 + ct*32}")
        a("s_waitcnt lgkmcnt(0)")
        a(f"s_mov_b32 s{sWP}, 1")

    def young_tiles_issue(lo, n):
        for i in range(lo, n):
            if ypace and i >= ypace:
                a.wait_vm(f"V{i-ypace}")
            issue_K(i, i, "c", i)
            issue_V(i, i, i)
    def young_tiles_process(n):
        for i in range(n):
            a.wait_vm(f"K{i}")
            qk(KB(i), vS[0])
            a.wait_vm(f"V{i}")
            softmax_pv(vS[0], VB(i))

    def lds_init_barrier():
        a(f"s_add_u32 s61, s{sB0}, {4*NB}")
        a(f"v_mov_b32 v{vT+6}, s61")
        for i in range(7, 12):
            a(f"v_mov_b32 v{vT+i}, 0")
        a(f"ds_write_b64 v{vCA}, v[{vT+6}:{vT+7}] offset:{L_CNT}")
        a(f"ds_write_b128 v{vCA}, v[{vT+8}:{vT+11}] offset:{L_CNT+8}")
        a(f"ds_write_b32 v{vCA}, v{vT+7} offset:{L_CNT+24}")
        a("s_waitcnt lgkmcnt(0)")
        a("s_barrier")
    def q_wait():
        n = npoll[0]; npoll[0] += 1
        a.label(f"L1_poll{n}")
        a(f"ds_read_b32 v{vT}, v{vCA} offset:{L_CNT+4}")
        a("s_waitcnt lgkmcnt(0)")
        a(f"v_readfirstlane_b32 s61, v{vT}")
        a("s_cmp_ge_u32 s61, 4")
        a(f"s_cbranch_scc1 L1_polled{n}")
        a("s_sleep 1")
        a(f"s_branch L1_poll{n}")
        a.label(f"L1_polled{n}")
    a("s_cmp_lt_u32 s3, 4")
    a("s_cbranch_scc1 L1_pathA")
    a.q = []
    a(f"s_setprio {yprio}")
    a("s_sub_u32 s61, s3, 4")
    a(f"s_mul_i32 s61, s61, {NT}")
    a("s_mov_b32 s15, s61")
    tau_to_off(15, sOFF)
    if ystamp:
        a("s_memrealtime s[100:101]")
    young_tiles_issue(0, 1)
    for k in range(1, NT):
        a("s_add_u32 s15, s15, 1")
        tau_to_off(15, sOFF + k)
    lds_init_barrier()
    young_tiles_issue(1, NT)
    if ystamp:
        qsave = list(a.q)
        for i in range(NT):
            a.wait_vm(f"V{i}")
            if i >= NT - 4: a(f"s_memrealtime s[{92+2*(i-NT+4)}:{93+2*(i-NT+4)}]")
    q_wait()
    qfrag()
    if not ystamp: STAMP(1)
    young_tiles_process(NT)
    a("s_cmp_eq_u32 s3, 4")
    a("s_cbranch_scc0 L1_yexit")
    if dynffn:
        a.label("L1_mpoll")
        a(f"ds_read_b32 v{vT}, v{vCA} offset:{L_CNT+24}")
        a("s_waitcnt lgkmcnt(0)")
        a(f"v_readfirstlane_b32 s61, v{vT}")
        a("s_cmp_eq_u32 s61, 1")
        a("s_cbranch_scc1 L1_mgot")
        a("s_sleep 8")
        a("s_branch L1_mpoll")
        a.label("L1_mgot")
        a(f"v_mov_b32 v{vT}, 1")
        a("s_mov_b64 exec, 1")
        a(f"buffer_atomic_add v{vT}, v{vCA}, s[{SDBG}:{SDBG+3}], 0 offen sc0 sc1")
        a("s_mov_b64 exec, -1")
        a("s_waitcnt vmcnt(0)")
        a(f"v_readfirstlane_b32 s85, v{vT}")
        a("s_cmp_lt_u32 s85, 56")
        a("s_cbranch_scc0 L1_yexit")
    else:
        a(f"s_cmp_eq_u32 s{sFF}, 1")
        a("s_cbranch_scc0 L1_yexit")
    if "ffn" in abl: a("s_branch L1_yexit")
    a.q = []
    L_H = 147456
    hW, hX, hA, hT = vR, vR + 96, vW, vT
    hR, hC, hO1, hO2 = vW + 16, vW + 17, vW + 18, vW + 19
    a(f"v_lshrrev_b32 v{hR}, 2, v0")
    a(f"v_and_b32 v{hC}, 3, v0")
    a("s_mov_b32 s61, 114688")
    a(f"v_mul_lo_u32 v{hO1}, v{hR}, s61")
    a(f"v_lshl_add_u32 v{hO1}, v{hC}, 4, v{hO1}")
    a(f"v_lshlrev_b32 v{hT}, 6, v{hR}")
    a(f"v_lshlrev_b32 v{hO2}, 4, v0")
    for b in range(2):
        for k in range(4):
            r = hX + b * 16 + 4 * k
            a.vm(f"buffer_load_dwordx4 v[{r}:{r+3}], v{hT}, s[{SX}:{SX+3}], 0 offen offset:{b*1024 + k*16}", "hx")
    a("s_lshl_b32 s69, s85, 6")
    a("s_lshl_b32 s70, s85, 15")
    def h_issue_w1(ph):
        buf = ph % 3
        for i in range(8 * ph, 8 * ph + 8):
            if i & 1 == 0:
                a(f"s_add_u32 s61, s69, {i*3584}")
            r = hW + buf * 32 + (i & 7) * 4
            a.vm(f"buffer_load_dwordx4 v[{r}:{r+3}], v{hO1}, s[{SW1}:{SW1+3}], s61 offen offset:{(i&1)*3584} {pol_w}", f"w1_{ph}")
    def h_issue_w2(ph):
        buf = (ph + 4) % 3
        for j in range(8 * ph, 8 * ph + 8):
            if j & 3 == 0:
                a(f"s_add_u32 s61, s70, {j*1024}")
            r = hW + buf * 32 + (j & 7) * 4
            a.vm(f"buffer_load_dwordx4 v[{r}:{r+3}], v{hO2}, s[{SW2}:{SW2+3}], s61 offen offset:{(j&3)*1024} {pol_w}", f"w2_{ph}")
    h_issue_w1(0); h_issue_w1(1); h_issue_w1(2)
    for i in range(16):
        a(f"v_mov_b32 v{hA+i}, 0")
    def h_compute(buf, xs):
        for p in range(4):
            r0, r1 = hW + buf * 32 + 8 * p, hW + buf * 32 + 8 * p + 4
            for d in range(4):
                tl, th = hT + 2 + 2 * (d & 1), hT + 3 + 2 * (d & 1)
                a(f"v_perm_b32 v{tl}, v{r1+d}, v{r0+d}, s{sSELLO}")
                a(f"v_perm_b32 v{th}, v{r1+d}, v{r0+d}, s{sSELHI}")
                for b in range(2):
                    a(f"v_dot2_f32_bf16 v{hA+b*8+2*d}, v{tl}, v{xs(b,p)}, v{hA+b*8+2*d}")
                    a(f"v_dot2_f32_bf16 v{hA+b*8+2*d+1}, v{th}, v{xs(b,p)}, v{hA+b*8+2*d+1}")
    a.wait_vm("hx")
    for ph in range(4):
        a.wait_vm(f"w1_{ph}")
        h_compute(ph % 3, lambda b, p, ph=ph: hX + b * 16 + ph * 4 + p)
        if ph == 0:
            h_issue_w1(3)
        else:
            h_issue_w2(ph - 1)
    a(f"v_lshlrev_b32 v{hT}, 8, v{hR}")
    a(f"v_lshl_add_u32 v{hT}, v{hC}, 5, v{hT}")
    a(f"v_add_u32 v{hT}, {L_H}, v{hT}")
    a("s_nop 2")
    for b in range(2):
        a(f"ds_write_b128 v{hT}, v[{hA+b*8}:{hA+b*8+3}] offset:{b*128}")
        a(f"ds_write_b128 v{hT}, v[{hA+b*8+4}:{hA+b*8+7}] offset:{b*128 + 16}")
    a(f"v_lshlrev_b32 v{hT+1}, 2, v0")
    a(f"v_add_u32 v{hT+1}, {L_H}, v{hT+1}")
    a("s_waitcnt lgkmcnt(0)")
    for rr in range(16):
        a(f"ds_read_b32 v{hX+rr}, v{hT+1} offset:{rr*256}")
    a("s_waitcnt lgkmcnt(0)")
    for st in (1, 2, 4, 8):
        for i in range(0, 16, 2 * st):
            a(f"v_add_f32 v{hX+i}, v{hX+i}, v{hX+i+st}")
    hv, e = hX, hX + 1
    a(f"v_cvt_pk_bf16_f32 v{hv}, v{hv}, v{hv}")
    a(f"v_lshlrev_b32 v{hv}, 16, v{hv}")
    a(f"v_mul_f32 v{e}, 0x{f2u(-LOG2E):08x}, v{hv}")
    a(f"v_exp_f32 v{e}, v{e}")
    a("s_nop 0")
    a(f"v_add_f32 v{e}, 1.0, v{e}")
    a(f"v_rcp_f32 v{e}, v{e}")
    a("s_nop 0")
    a(f"v_mul_f32 v{hv}, v{hv}, v{e}")
    a(f"v_cvt_pk_bf16_f32 v{hv}, v{hv}, v{hv}")
    a(f"v_lshlrev_b32 v{hT+1}, 1, v0")
    a(f"v_add_u32 v{hT+1}, {L_H+4096}, v{hT+1}")
    a(f"ds_write_b16 v{hT+1}, v{hv}")
    a(f"v_mov_b32 v{hT+1}, {L_H+4096}")
    a("s_waitcnt lgkmcnt(0)")
    for k in range(8):
        a(f"ds_read_b128 v[{hX+4*k}:{hX+4*k+3}], v{hT+1} offset:{16*k}")
    for i in range(16):
        a(f"v_mov_b32 v{hA+i}, 0")
    a("s_waitcnt lgkmcnt(0)")
    for ph in range(4):
        a.wait_vm(f"w2_{ph}")
        h_compute((ph + 4) % 3, lambda b, p, ph=ph: hX + b * 16 + ph * 4 + p)
        if ph == 0:
            h_issue_w2(3)
    fK = vR + 64
    a("s_nop 2")
    for i in range(16):
        a(f"v_mov_b32 v{fK+i}, v{hA+i}")
    a(f"v_lshrrev_b32 v{fK+16}, 1, v0")
    a(f"v_lshlrev_b32 v{fK+16}, 12, v{fK+16}")
    a(f"v_and_b32 v{fK+17}, 1, v0")
    a(f"v_lshl_add_u32 v{fK+16}, v{fK+17}, 5, v{fK+16}")
    a("s_mov_b32 s84, 1")
    a.label("L1_yexit")
    if not ystamp: STAMP(2)
    wo_flag_wait()
    wperm()
    a("s_branch L1_comb")

    a.q = []
    a.label("L1_pathA")
    a(f"s_setprio {oprio}")
    vX = vW
    a(f"v_lshlrev_b32 v{vT}, 6, v{vG}")
    a("s_lshl_b32 s61, s63, 10")
    a("s_lshl_b32 s69, s3, 8")
    a("s_add_u32 s61, s61, s69")
    for k in range(4):
        a.vm(f"buffer_load_dwordx4 v[{vX+4*k}:{vX+4*k+3}], v{vT}, s[{SX}:{SX+3}], s61 offen offset:{16*k}", "x")
    a(f"v_lshlrev_b32 v{vT+1}, 4, v{vCc}")
    a(f"v_lshl_add_u32 v{vT+1}, v{vG}, 18, v{vT+1}")
    a(f"s_add_u32 s61, s{sB0}, s3")
    a("s_mov_b32 s15, s61")
    a("s_lshl_b32 s83, s3, 20")
    a("s_lshl_b32 s69, s62, 8")
    a("s_add_u32 s83, s83, s69")
    a("s_lshl_b32 s70, s3, 15")
    a(f"s_add_u32 s70, s70, {L_W}")
    ntile = 0
    for i in range(32):
        a(f"s_add_u32 m0, s70, {i*1024}")
        a(f"s_add_u32 s61, s83, {i*8192}")
        if "wq" in abl and i % 8 != 7:
            a.q.append(f"wq{i}"); a.q.pop()
        else:
            a.vm(f"buffer_load_dwordx4 v{vT+1}, s[{SWQ}:{SWQ+3}], s61 offen lds", f"wq{i}")
        if i == 3:
            lds_init_barrier()
        if (i + 1) % wq_chunk == 0 and ntile < NB:
            tau_to_off(15, sOFF + ntile)
            a("s_add_u32 s15, s15, 4")
            issue_K(ntile, ntile); issue_V(ntile, ntile); ntile += 1
    while ntile < NB:
        tau_to_off(15, sOFF + ntile)
        a("s_add_u32 s15, s15, 4")
        issue_K(ntile, ntile); issue_V(ntile, ntile); ntile += 1
    acc = [vS[0] + i for i in range(4)] + [vS[1] + i for i in range(4)]
    for i in range(8):
        a(f"v_mov_b32 v{acc[i]}, 0")
    vWL = vT + 6
    a(f"v_lshlrev_b32 v{vWL}, 4, v0")
    a(f"v_add_u32 v{vWL}, s70, v{vWL}")
    def wqr(p): return vW + 16 + 8 * (p & 3)
    saved_q = None
    def wq_read(p):
        a.wait_vm("x", f"wq{2*p+1}")
        r = wqr(p)
        a(f"ds_read_b128 v[{r}:{r+3}], v{vWL} offset:{2*p*1024}")
        a(f"ds_read_b128 v[{r+4}:{r+7}], v{vWL} offset:{(2*p+1)*1024}")
    for p in range(3):
        wq_read(p)
    for p in range(16):
        rem = min(16 - 1 - p, 2)
        a(f"s_waitcnt lgkmcnt({2*rem})")
        r0 = wqr(p); r1 = r0 + 4
        for d in range(4):
            tl, th = vT + 2 + 2 * (d & 1), vT + 3 + 2 * (d & 1)
            a(f"v_perm_b32 v{tl}, v{r1+d}, v{r0+d}, s{sSELLO}")
            a(f"v_perm_b32 v{th}, v{r1+d}, v{r0+d}, s{sSELHI}")
            a(f"v_dot2_f32_bf16 v{acc[2*d]}, v{tl}, v{vX+p}, v{acc[2*d]}")
            a(f"v_dot2_f32_bf16 v{acc[2*d+1]}, v{th}, v{vX+p}, v{acc[2*d+1]}")
        if p + 3 < 16:
            wq_read(p + 3)
    reduce_scatter8(acc)
    a(f"ds_write_b64 v{vLD}, v[{acc[0]}:{acc[1]}] offset:{L_QP}")
    a("s_waitcnt lgkmcnt(0)")
    a("s_mov_b64 exec, 1")
    a(f"ds_add_u32 v{vCA}, v{vC1} offset:{L_CNT+4}")
    a("s_mov_b64 exec, -1")
    q_wait()
    qfrag()
    a("s_setprio 0")
    STAMP(1)
    if clk: a("s_memtime s[16:17]")
    if stamp:
        a("s_lshl_b32 s61, s3, 9")
        a(f"v_mov_b32 v{vLG}, s61")
        a("s_memrealtime s[100:101]")
    grab_issue()
    wo_setup()
    npeel = -(-32 // (U * wo_per_step))
    def patof(seq):
        if seq < NB: return "c"
        if seq < npeel * U: return kpeel[seq % len(kpeel)]
        return kpat[(seq % U) % len(kpat)]
    assert U % len(kpat) == 0
    piece = 0
    for ps_ in range(npeel):
        for k in range(U):
            seq = ps_ * U + k
            buf = k % NB
            a.wait_vm(f"K{seq}")
            qk(KB(buf), vS[0], patof(seq))
            a.wait_vm(f"V{seq}")
            softmax_pv(vS[0], VB(buf))
            a(f"s_cmp_eq_u32 s{sOFF + (k+1) % U}, 0x{OOB:x}")
            a("s_cbranch_scc1 L1_exit")
            grab_resolve(k + NB)
            grab_issue()
            issue_K(seq + NB, buf, patof(seq + NB))
            issue_V(seq + NB, buf)
            for _ in range(wo_per_step):
                if piece < 32:
                    wo_piece(piece, True); piece += 1
    a("s_mov_b32 s82, 1")
    if dynffn: a(f"ds_write_b32 v{vCA}, v{vC1} offset:{L_CNT+24}")
    a.label("L1_body")
    for k in range(U):
        buf = k % NB
        a(f"s_waitcnt vmcnt({8*NB-4})")
        qk(KB(buf), vS[0], patof(npeel * U + k))
        a(f"s_waitcnt vmcnt({8*(NB-1)})")
        softmax_pv(vS[0], VB(buf))
        a(f"s_cmp_eq_u32 s{sOFF + (k+1) % U}, 0x{OOB:x}")
        a("s_cbranch_scc1 L1_exit")
        grab_resolve(k + NB)
        grab_issue()
        issue_K(k + NB, buf, patof(npeel * U + k + NB))
        issue_V(k + NB, buf)
    a(f"s_cmp_eq_u32 s{sWP}, 1")
    a("s_cbranch_scc1 L1_body")
    a("s_waitcnt lgkmcnt(0)")
    wo_flag_set()
    wperm()
    a("s_branch L1_body")
    a.label("L1_exit")
    if dynffn: a(f"ds_write_b32 v{vCA}, v{vC1} offset:{L_CNT+24}")
    STAMP(2)
    if clk: a("s_memtime s[18:19]")
    a(f"s_cmp_eq_u32 s{sWP}, 1")
    a("s_cbranch_scc1 L1_comb")
    a("s_cmp_eq_u32 s82, 1")
    a("s_cbranch_scc1 L1_wo_issued")
    for n in range(32):
        wo_piece(n, False)
    a.label("L1_wo_issued")
    a("s_waitcnt vmcnt(0) lgkmcnt(0)")
    wo_flag_set()
    wperm()
    a.label("L1_comb")

    x1, x2, MW, f = vT, vT + 1, vT + 2, vT + 3
    a(f"v_mov_b32 v{x1}, v{vM}")
    a(f"v_mov_b32 v{x2}, v{vM}")
    a("s_nop 1")
    a(f"v_permlane32_swap_b32 v{x1}, v{x2}")
    a(f"v_max_f32 v{x1}, v{x1}, v{x2}")
    a(f"v_mov_b32 v{x2}, v{x1}")
    a("s_nop 1")
    a(f"v_permlane16_swap_b32 v{x1}, v{x2}")
    a(f"v_max_f32 v{MW}, v{x1}, v{x2}")
    a(f"v_sub_f32 v{f}, v{vM}, v{MW}")
    a(f"v_mul_f32 v{f}, s{sC}, v{f}")
    a(f"v_exp_f32 v{f}, v{f}")
    a("s_nop 0")
    a(f"v_mul_f32 v{x1}, v{f}, v{vL}")
    a(f"v_mul_f32 v{x2}, v{f}, v{vL}")
    for i in range(8):
        a(f"v_mul_f32 v{vO+i}, v{f}, v{vO+i}")
    a(f"v_permlane32_swap_b32 v{x1}, v{x2}")
    a(f"v_add_f32 v{x1}, v{x1}, v{x2}")
    a(f"v_mov_b32 v{x2}, v{x1}")
    a("s_nop 1")
    a(f"v_permlane16_swap_b32 v{x1}, v{x2}")
    a(f"v_add_f32 v{MW+1}, v{x1}, v{x2}")
    reduce_scatter8([vO + i for i in range(8)])
    a(f"ds_write_b64 v{vLD}, v[{vO}:{vO+1}] offset:{L_OP}")
    a("s_lshl_b32 s61, s3, 3")
    a(f"v_mov_b32 v{x1}, s61")
    a(f"ds_write_b64 v{x1}, v[{MW}:{MW+1}] offset:{L_ML}")
    aOP, aPW, aPR, aY = vM, vL, vS[0], vKO
    a(f"v_lshlrev_b32 v{aOP}, 3, v0")
    a("s_lshl_b32 s61, s3, 9")
    a(f"s_add_u32 s61, s61, {L_P}")
    a(f"v_lshlrev_b32 v{aPW}, 2, v0")
    a(f"v_add_u32 v{aPW}, s61, v{aPW}")
    a(f"v_and_b32 v{aPR}, 1, v{vCc}")
    a(f"v_lshlrev_b32 v{aPR}, 8, v{aPR}")
    a(f"v_lshl_add_u32 v{aPR}, v{vG}, 4, v{aPR}")
    a(f"v_add_u32 v{aPR}, s61, v{aPR}")
    a(f"v_and_b32 v{x2}, 2, v{vCc}")
    a(f"v_cmp_eq_u32 s[16:17], 0, v{x2}")
    a(f"v_lshlrev_b32 v{aY}, 2, v{vCc}")
    a(f"v_lshl_add_u32 v{aY}, v{vG}, 13, v{aY}")
    for gg in range(1, 4):
        a(f"v_cmp_eq_u32 s[{16+2*gg}:{17+2*gg}], {gg}, v{vG}")
    a("s_lshl_b32 s61, s63, 5")
    a("s_lshl_b32 s69, s3, 2")
    a("s_add_u32 s61, s61, s69")
    a("s_lshl_b32 s61, s61, 13")
    a("s_lshl_b32 s69, s62, 2")
    a("s_add_u32 s69, s69, s64")
    a("s_lshl_b32 s70, s69, 6")
    a("s_add_u32 s60, s61, s70")
    a("s_waitcnt vmcnt(0)")
    for i in range(16):
        a(f"v_mov_b32 v{vR+16+i}, 0")
    a("s_waitcnt lgkmcnt(0)")
    a("s_barrier")
    if ystamp:
        a("s_cmp_ge_u32 s3, 4"); a("s_cbranch_scc1 L1_ns4")
    STAMP(4)
    if ystamp: a.label("L1_ns4")
    a(f"v_mov_b32 v{x1}, 0")
    for i in range(4):
        a(f"ds_read_b128 v[{vQ+4*i}:{vQ+4*i+3}], v{x1} offset:{L_ML + 16*i}")
    op = [vR + 2 * w for w in range(8)]
    for w in range(8):
        a(f"ds_read_b64 v[{op[w]}:{op[w]+1}], v{aOP} offset:{L_OP + w*512}")
    a("s_waitcnt lgkmcnt(8)")
    Mt, Lt = vT + 4, vT + 5
    a(f"v_max3_f32 v{Mt}, v{vQ}, v{vQ+2}, v{vQ+4}")
    a(f"v_max3_f32 v{Mt}, v{vQ+6}, v{vQ+8}, v{Mt}")
    a(f"v_max3_f32 v{Mt}, v{vQ+10}, v{vQ+12}, v{Mt}")
    a(f"v_max_f32 v{Mt}, v{vQ+14}, v{Mt}")
    for w in range(8):
        a(f"v_sub_f32 v{vQ+2*w}, v{vQ+2*w}, v{Mt}")
    for w in range(8):
        a(f"v_mul_f32 v{vQ+2*w}, s{sC}, v{vQ+2*w}")
    for w in range(8):
        a(f"v_exp_f32 v{vQ+2*w}, v{vQ+2*w}")
    a("s_waitcnt lgkmcnt(0)")
    o0, o1, hi, lo = vT + 6, vT + 7, vT + 8, vT + 9
    a(f"v_mul_f32 v{o0}, v{vQ}, v{op[0]}")
    a(f"v_mul_f32 v{o1}, v{vQ}, v{op[0]+1}")
    for w in range(1, 8):
        a(f"v_fma_f32 v{o0}, v{vQ+2*w}, v{op[w]}, v{o0}")
        a(f"v_fma_f32 v{o1}, v{vQ+2*w}, v{op[w]+1}, v{o1}")
    a(f"v_cvt_pk_bf16_f32 v{hi}, v{o0}, v{o1}")
    a(f"v_lshlrev_b32 v{x1}, 16, v{hi}")
    a(f"v_and_b32 v{x2}, 0xffff0000, v{hi}")
    a(f"v_sub_f32 v{o0}, v{o0}, v{x1}")
    a(f"v_sub_f32 v{o1}, v{o1}, v{x2}")
    a(f"v_cvt_pk_bf16_f32 v{lo}, v{o0}, v{o1}")
    a(f"ds_write_b32 v{aPW}, v{hi}")
    a(f"ds_write_b32 v{aPW}, v{lo} offset:256")
    a(f"v_mul_f32 v{Lt}, v{vQ}, v{vQ+1}")
    for w in range(1, 8):
        a(f"v_fma_f32 v{Lt}, v{vQ+2*w}, v{vQ+2*w+1}, v{Lt}")
    a("s_waitcnt lgkmcnt(0)")
    AF = vR + 16
    a("s_mov_b64 exec, s[16:17]")
    for ks in range(4):
        a(f"ds_read_b128 v[{AF+4*ks}:{AF+4*ks+3}], v{aPR} offset:{ks*64}")
    a("s_mov_b64 exec, -1")
    DA = vR + 32
    for ks in range(4):
        a(f"s_waitcnt lgkmcnt({3-ks})")
        for ct in range(4):
            c = "0" if ks == 0 else f"v[{DA+4*ct}:{DA+4*ct+3}]"
            a(f"v_mfma_f32_16x16x32_bf16 v[{DA+4*ct}:{DA+4*ct+3}], v[{AF+4*ks}:{AF+4*ks+3}], v[{BF(ks,ct)}:{BF(ks,ct)+3}], {c}")
    a("s_nop 7")
    ac = [vO + i for i in range(4)]
    for ct in range(4):
        a(f"v_add_f32 v{ac[ct]}, v{DA+4*ct}, v{DA+4*ct+1}")
    for gg in range(1, 4):
        a(f"v_cndmask_b32 v{ac[0]}, v{ac[0]}, v{ac[gg]}, s[{16+2*gg}:{17+2*gg}]")
    a(f"buffer_store_dword v{ac[0]}, v{aY}, s[{SWS}:{SWS+3}], s60 offen")
    if ystamp:
        a("s_cmp_ge_u32 s3, 4"); a("s_cbranch_scc1 L1_ns3")
    STAMP(3)
    if ystamp: a.label("L1_ns3")
    if clk:
        a("s_waitcnt lgkmcnt(0)")
        a("s_mov_b32 s98, s16"); a("s_mov_b32 s100, s18")
    STAMP_STORE(6, ["s_lshl_b32 s61, s2, 4", "s_add_u32 s61, s61, s3", "s_lshl_b32 s61, s61, 5"], SWS, vQ)
    if stamp:
        a("s_cmp_ge_u32 s3, 4")
        a("s_cbranch_scc1 L1_nolog")
        a("s_lshl_b32 s61, s3, 9")
        a(f"v_lshlrev_b32 v{vQ}, 3, v0")
        a(f"v_add_u32 v{vQ+1}, s61, v{vQ}")
        a(f"ds_read_b64 v[{vQ+2}:{vQ+3}], v{vQ+1} offset:{L_LOG}")
        a("s_lshl_b32 s70, s2, 11")
        a("s_add_u32 s61, s61, s70")
        a(f"s_add_u32 s61, s61, {WS_ST + 262144}")
        a("s_waitcnt lgkmcnt(0)")
        a(f"buffer_store_dwordx2 v[{vQ+2}:{vQ+3}], v{vQ}, s[{SWS}:{SWS+3}], s61 offen")
        a.label("L1_nolog")
    a("s_cmp_eq_u32 s84, 1")
    a("s_cbranch_scc0 L1_noffn")
    a("s_lshl_b32 s61, s85, 6")
    a(f"s_add_u32 s61, s61, {WS_BP}")
    a(f"s_add_u32 s70, s61, {32*64*64}")
    for b in range(2):
        so = "s61" if b == 0 else "s70"
        a(f"buffer_store_dwordx4 v[{fK+b*8}:{fK+b*8+3}], v{fK+16}, s[{SWS}:{SWS+3}], {so} offen")
        a(f"buffer_store_dwordx4 v[{fK+b*8+4}:{fK+b*8+7}], v{fK+16}, s[{SWS}:{SWS+3}], {so} offen offset:16")
    a.label("L1_noffn")
    a("s_cmp_lg_u32 s3, 0")
    a("s_cbranch_scc1 L1_done")
    a("s_lshl_b32 s61, s63, 7")
    a("s_add_u32 s61, s61, s69")
    a("s_lshl_b32 s61, s61, 3")
    a(f"s_add_u32 s61, s61, {WS_ML}")
    a(f"v_mov_b32 v{x1}, 0")
    a("v_cmp_eq_u32 vcc, 0, v0")
    a("s_and_saveexec_b64 s[70:71], vcc")
    assert Mt % 2 == 0 and Lt == Mt + 1
    a(f"buffer_store_dwordx2 v[{Mt}:{Lt}], v{x1}, s[{SWS}:{SWS+3}], s61 offen")
    a.label("L1_done")
    a("s_endpgm")

    a.q = []
    a.raw(".globl fin_kernel")
    a.raw(".p2align 8")
    a.raw(".type fin_kernel,@function")
    a.label("fin_kernel")
    a("s_cmp_ge_u32 s2, 64")
    a("s_cbranch_scc1 L2_done")
    STAMP(0)
    a("s_load_dwordx2 s[4:5], s[0:1], 0")
    a("s_load_dwordx8 s[20:27], s[0:1], 64")
    a("v_lshrrev_b32 v1, 6, v0")
    a("v_and_b32 v2, 15, v0")
    a("v_lshrrev_b32 v3, 4, v0")
    a("v_readfirstlane_b32 s3, v1")
    a("s_lshr_b32 s63, s2, 5")
    a("v_lshlrev_b32 v4, 2, v2")
    a("v_lshl_add_u32 v4, v3, 9, v4")
    a("v_lshlrev_b32 v5, 6, v3")
    a("v_lshlrev_b32 v6, 8, v3")
    a("v_lshl_add_u32 v6, v2, 2, v6")
    a("v_lshlrev_b32 v7, 2, v0")
    a("s_lshl_b32 s60, s2, 13")
    a("s_lshl_b32 s61, s63, 10")
    a(f"s_add_u32 s62, s61, {WS_ML}")
    a("s_lshl_b32 s64, s2, 12")
    a(f"s_add_u32 s64, s64, {WS_BP}")
    a("s_waitcnt lgkmcnt(0)")
    srd(SWS, 26, WS_BYTES)
    srd(SX, 4, 2048)
    srd(32, 20, 1024)
    srd(36, 22, 2048)
    ML = 24
    for i in range(4):
        a.vm(f"buffer_load_dwordx4 v[{ML+4*i}:{ML+4*i+3}], v5, s[{SWS}:{SWS+3}], s62 offen offset:{i*16}", "ml")
    Y = 16
    for i in range(8):
        a.vm(f"buffer_load_dword v{Y+i}, v4, s[{SWS}:{SWS+3}], s60 offen offset:{i*64}", "y")
    BP = 40
    for i in range(4):
        a(f"v_mov_b32 v{BP+i}, 0")
    a("v_cmp_gt_u32 vcc, 14, v3")
    a("s_and_saveexec_b64 s[70:71], vcc")
    for i in range(4):
        a.vm(f"buffer_load_dword v{BP+i}, v6, s[{SWS}:{SWS+3}], s64 offen offset:{i*64}", "bp")
    a("s_mov_b64 exec, s[70:71]")
    a.vm(f"buffer_load_dword v54, v7, s[{SX}:{SX+3}], s61 offen", "g")
    a.vm("buffer_load_dword v55, v7, s[32:35], 0 offen", "g")
    sC2 = 67
    a(f"s_mov_b32 s{sC2}, 0x{f2u(LOG2E if mimic else LOG2E * SCALE):08x}")
    a.wait_vm("ml")
    for hh in range(2):
        B = ML + hh * 8
        Mx, Ls = 8 + hh * 2, 9 + hh * 2
        a(f"v_max3_f32 v{Mx}, v{B}, v{B+2}, v{B+4}")
        a(f"v_max_f32 v{Mx}, v{B+6}, v{Mx}")
        for s_ in range(4):
            a(f"v_sub_f32 v{B+2*s_}, v{B+2*s_}, v{Mx}")
        for s_ in range(4):
            a(f"v_mul_f32 v{B+2*s_}, s{sC2}, v{B+2*s_}")
        for s_ in range(4):
            a(f"v_exp_f32 v{B+2*s_}, v{B+2*s_}")
        a("s_nop 0")
        a(f"v_mul_f32 v{Ls}, v{B}, v{B+1}")
        for s_ in range(1, 4):
            a(f"v_fma_f32 v{Ls}, v{B+2*s_}, v{B+2*s_+1}, v{Ls}")
        a(f"v_rcp_f32 v{Ls}, v{Ls}")
    a.wait_vm("y")
    for hh in range(2):
        B = ML + hh * 8
        Mx = 8 + hh * 2
        a(f"v_mul_f32 v{Mx}, v{B}, v{Y+hh*4}")
        for s_ in range(1, 4):
            a(f"v_fma_f32 v{Mx}, v{B+2*s_}, v{Y+hh*4+s_}, v{Mx}")
    a("v_mul_f32 v12, v8, v9")
    a("v_fma_f32 v12, v10, v11, v12")
    a.wait_vm("bp")
    a(f"v_add_f32 v13, v{BP}, v{BP+1}")
    a(f"v_add_f32 v14, v{BP+2}, v{BP+3}")
    a("v_add_f32 v13, v13, v14")
    a.wait_vm("g")
    a("v_lshlrev_b32 v56, 16, v54")
    a("v_and_b32 v57, 0xffff0000, v54")
    a("v_lshlrev_b32 v58, 16, v55")
    a("v_and_b32 v59, 0xffff0000, v55")
    a("v_mul_f32 v56, v56, v58")
    a("v_mul_f32 v57, v57, v59")
    a("v_cvt_pk_bf16_f32 v56, v56, v57")
    a("v_lshlrev_b32 v57, 16, v56")
    a("v_and_b32 v56, 0xffff0000, v56")
    a("v_add_f32 v14, v56, v57")
    a("v_permlane32_swap_b32 v12, v13")
    a("v_add_f32 v12, v12, v13")
    a("v_mov_b32 v13, v12")
    a("v_mov_b32 v15, v14")
    a("s_nop 0")
    a("v_permlane16_swap_b32 v12, v13")
    a("v_permlane32_swap_b32 v14, v15")
    a("v_add_f32 v12, v12, v13")
    a("v_add_f32 v14, v14, v15")
    a("v_mov_b32 v15, v14")
    a("s_nop 1")
    a("v_permlane16_swap_b32 v14, v15")
    a("v_add_f32 v14, v14, v15")
    for rr in (8, 4, 2, 1):
        a("s_nop 1")
        a(f"v_add_f32_dpp v14, v14, v14 row_ror:{rr} row_mask:0xf bank_mask:0xf")
    a("v_and_b32 v4, 63, v0")
    a("v_lshrrev_b32 v5, 5, v4")
    a("v_lshlrev_b32 v5, 6, v5")
    a("v_lshl_add_u32 v5, v2, 2, v5")
    a("s_lshl_b32 s61, s3, 7")
    a("v_add_u32 v5, s61, v5")
    a("ds_write_b32 v5, v12")
    a("s_lshl_b32 s61, s3, 2")
    a("v_mov_b32 v6, s61")
    a("ds_write_b32 v6, v14 offset:512")
    a("s_waitcnt lgkmcnt(0)")
    a("s_barrier")
    a("s_cmp_lg_u32 s3, 0")
    a("s_cbranch_scc1 L2_done")
    a("v_lshlrev_b32 v5, 2, v2")
    for w in range(4):
        a(f"ds_read_b32 v{16+w}, v5 offset:{w*128}")
        a(f"ds_read_b32 v{20+w}, v5 offset:{w*128+64}")
    a("v_mov_b32 v6, 0")
    a("ds_read_b128 v[24:27], v6 offset:512")
    a("s_waitcnt lgkmcnt(0)")
    a("v_add_f32 v16, v16, v17"); a("v_add_f32 v18, v18, v19"); a("v_add_f32 v16, v16, v18")
    a("v_add_f32 v20, v20, v21"); a("v_add_f32 v22, v22, v23"); a("v_add_f32 v20, v20, v22")
    a("v_add_f32 v24, v24, v25"); a("v_add_f32 v26, v26, v27"); a("v_add_f32 v24, v24, v26")
    def rbf(r):
        a(f"v_cvt_pk_bf16_f32 v{r}, v{r}, v{r}")
        a(f"v_lshlrev_b32 v{r}, 16, v{r}")
    rbf(16); rbf(20); rbf(24)
    a(f"v_mul_f32 v24, 0x{f2u(-LOG2E):08x}, v24")
    a("v_exp_f32 v24, v24")
    a("s_nop 0")
    a("v_add_f32 v24, 1.0, v24")
    a("v_rcp_f32 v24, v24")
    a("s_nop 0")
    rbf(24)
    a("v_sub_f32 v25, 1.0, v24")
    rbf(25)
    a("v_mul_f32 v16, v24, v16"); rbf(16)
    a("v_mul_f32 v20, v25, v20"); rbf(20)
    a("v_add_f32 v16, v16, v20")
    a("v_cvt_pk_bf16_f32 v16, v16, v16")
    a("s_lshl_b32 s61, s2, 5")
    a("v_lshlrev_b32 v5, 1, v2")
    a("v_cmp_gt_u32 vcc, 16, v0")
    a("s_and_saveexec_b64 s[70:71], vcc")
    a("buffer_store_short v16, v5, s[36:39], s61 offen")
    STAMP(1)
    STAMP_STORE(2, ["s_lshl_b32 s61, s2, 4", "s_add_u32 s61, s61, 131072"], SWS, 40)
    if dbg:
        a("s_cmp_lg_u32 s2, 0")
        a("s_cbranch_scc1 L2_done")
        a("v_lshrrev_b32 v30, 2, v0")
        a("v_mul_u32_u24 v30, 85*512, v30")
        a("v_and_b32 v31, 3, v0")
        a("v_lshl_add_u32 v30, v31, 2, v30")
        a(f"s_mov_b32 s61, {WS_ST}")
        a(f"buffer_load_dword v32, v30, s[{SWS}:{SWS+3}], s61 offen")
        a("s_mov_b32 s28, s24"); a("s_mov_b32 s29, s25"); a("s_mov_b32 s30, 256"); a("s_mov_b32 s31, 0x00020000")
        a("v_lshlrev_b32 v33, 2, v0")
        a("s_waitcnt vmcnt(0)")
        a("v_cmp_eq_u32 vcc, 12, v0")
        a("v_mov_b32 v34, s90")
        a("s_nop 1")
        a("v_cndmask_b32 v32, v32, v34, vcc")
        a("v_cmp_eq_u32 vcc, 13, v0")
        a("v_mov_b32 v34, s92")
        a("s_nop 1")
        a("v_cndmask_b32 v32, v32, v34, vcc")
        a("buffer_store_dword v32, v33, s[28:31], 0 offen")
    a.label("L2_done")
    a("s_endpgm")

    a.raw('.section .rodata,"a"')
    def kd(name, nv):
        a.raw(".p2align 6")
        a.raw(f".amdhsa_kernel {name}")
        a.raw(f"  .amdhsa_next_free_vgpr {nv}")
        a.raw("  .amdhsa_next_free_sgpr 102")
        a.raw(f"  .amdhsa_accum_offset {(nv+3)//4*4}")
        a.raw("  .amdhsa_group_segment_fixed_size 0")
        a.raw("  .amdhsa_kernarg_size 96")
        a.raw("  .amdhsa_user_sgpr_count 2")
        a.raw("  .amdhsa_user_sgpr_kernarg_segment_ptr 1")
        a.raw("  .amdhsa_system_sgpr_workgroup_id_x 1")
        a.raw(".end_amdhsa_kernel")
    kd("attn_kernel", NV1)
    kd("fin_kernel", 64)
    return "\n".join(a.L) + "\n"

if __name__ == "__main__":
    import argparse
    ap = argparse.ArgumentParser()
    ap.add_argument("-o", default=f"cdna_kernels/{KN}.s")
    ap.add_argument("--pol_kv", default="nt")
    ap.add_argument("--pol_w", default="")
    ap.add_argument("--nb", type=int, default=4)
    ap.add_argument("--nt", type=int, default=4)
    ap.add_argument("--mimic", action="store_true")
    ap.add_argument("--stamp", action="store_true")
    ap.add_argument("--ypace", type=int, default=2)
    ap.add_argument("--wops", type=int, default=2)
    ap.add_argument("--kpat", default="mc")
    ap.add_argument("--kpeel", default="c")
    ap.add_argument("--dbg", action="store_true")
    ap.add_argument("--oprio", type=int, default=3)
    ap.add_argument("--yprio", type=int, default=2)
    ap.add_argument("--wqc", type=int, default=8)
    ap.add_argument("--r0", type=int, default=30)
    ap.add_argument("--abl", default="")
    ap.add_argument("--ystamp", action="store_true")
    ap.add_argument("--clk", action="store_true")
    ap.add_argument("--statffn", action="store_true")
    args = ap.parse_args()
    open(args.o, "w").write(gen(pol_kv=args.pol_kv, pol_w=args.pol_w, NB=args.nb, NT=args.nt, mimic=args.mimic,
                                stamp=args.stamp, ypace=args.ypace, wo_per_step=args.wops, kpat=args.kpat, kpeel=args.kpeel, dbg=args.dbg, oprio=args.oprio, yprio=args.yprio, wq_chunk=args.wqc, R0=args.r0, abl=args.abl, ystamp=args.ystamp, clk=args.clk, dynffn=not args.statffn))
```

```python
import sys, math, struct

KN = "gated_mix__mha_block_cached__dense_activation_silu__decode"

def f2u(x):
    return struct.unpack("<I", struct.pack("<f", x))[0]

class Asm:
    def __init__(self):
        self.L = []
        self.q = []
    def __call__(self, s):
        self.L.append("  " + s)
    def label(self, s):
        self.L.append(s + ":")
    def raw(self, s):
        self.L.append(s)
    def vm(self, s, tag):
        self.L.append("  " + s)
        self.q.append(tag)
    def wait_vm(self, *tags):
        last = -1
        for i, t in enumerate(self.q):
            if t in tags:
                last = i
        if last < 0:
            return
        n = len(self.q) - 1 - last
        if n > 63:
            n = 63
            last = len(self.q) - 1 - n
        self.L.append(f"  s_waitcnt vmcnt({n})")
        self.q = self.q[last + 1:]

WS_Y = 0
WS_ML = 512 * 1024
WS_BP = 1024 * 1024
WS_ST = 4 * 1024 * 1024
WS_BYTES = 536870912

LOG2E = 1.4426950408889634
SCALE = 128 ** -0.5
OOB = 0x40000000

def gen(pol_kv="nt", pol_w="", NB=4, NT=4, mimic=False, stamp=False, ypace=2, wo_per_step=2, kpat="mc", kpeel="c", dbg=False, oprio=3, yprio=2, wq_chunk=8, R0=30, abl="", ystamp=False, clk=False, cpf=True):
    a = Asm()
    D = NB - 1
    U = {2: 4, 3: 6, 4: 4}[NB]
    def STAMP(k):
        if stamp or dbg:
            a(f"s_memrealtime s[{90+2*k}:{91+2*k}]")
    def STAMP_STORE(n, base_expr_lines, srd, vtmp):
        if not (stamp or dbg): return
        a("s_waitcnt lgkmcnt(0)")
        for l in base_expr_lines: a(l)
        a(f"s_add_u32 s61, s61, {WS_ST}")
        for k in range(n):
            a(f"v_mov_b32 v{vtmp+1+k}, s{90+2*k}")
        a(f"v_mov_b32 v{vtmp}, 0")
        for k in range(n):
            a(f"buffer_store_dword v{vtmp+1+k}, v{vtmp}, s[{srd}:{srd+3}], s61 offen offset:{4*k}")

    hdr = open(f"cdna_kernels/{KN}.s.ref").read().split("; Override launch")[0]
    a.raw(hdr.rstrip())
    a.raw("; @launch kernel=attn_kernel grid=(256,1,1) block=(512,1,1) lds=152064")
    a.raw("; @launch kernel=fin_kernel grid=(64,1,1) block=(256,1,1) lds=1024")
    a.raw('.amdgcn_target "amdgcn-amd-amdhsa--gfx950"')
    a.raw(".text")

    a.raw(".globl attn_kernel")
    a.raw(".p2align 8")
    a.raw(".type attn_kernel,@function")
    a.label("attn_kernel")
    a("s_cmp_ge_u32 s2, 256")
    a("s_cbranch_scc1 L1_done")
    STAMP(0)
    a("s_load_dwordx16 s[4:19], s[0:1], 0")
    a("s_load_dwordx8 s[20:27], s[0:1], 64")
    a("v_lshrrev_b32 v1, 6, v0")
    a("v_and_b32 v0, 63, v0")
    a("s_nop 0")
    a("v_readfirstlane_b32 s3, v1")
    sSELLO, sSELHI, sC = 65, 66, 67
    a(f"s_mov_b32 s{sSELLO}, 0x05040100")
    a(f"s_mov_b32 s{sSELHI}, 0x07060302")
    if mimic:
        a(f"s_mov_b32 s{sC}, 0x{f2u(LOG2E):08x}")
        a(f"s_mov_b32 s68, 0x{f2u(SCALE):08x}")
    else:
        a(f"s_mov_b32 s{sC}, 0x{f2u(LOG2E * SCALE):08x}")
    a("s_and_b32 s60, s2, 7")
    a("s_lshr_b32 s61, s2, 3")
    a("s_and_b32 s62, s61, 3")
    a("s_lshl_b32 s62, s62, 3")
    a("s_add_u32 s62, s62, s60")
    a("s_lshr_b32 s61, s61, 2")
    a("s_lshr_b32 s63, s61, 2")
    a("s_and_b32 s64, s61, 3")

    vG, vCc, vKO, vVO = 1, 2, 3, 4
    vM, vL, vLD = 5, 6, 7
    vT = 8
    vQ = 24
    vO = 40
    vS = [48, 52]
    vQc = 52
    vR = 56
    vW = vR + 128
    vCA, vC1 = vW + 65, vW + 66
    NV1 = vW + 70
    assert NV1 <= 256 and NB <= 4 and NT <= 6
    def KB(buf): return vR + buf * 32
    def VB(buf): return vR + buf * 32 + 16

    L_QP, L_QB, L_OP, L_ML, L_CNT, L_P = 0, 2048, 4096, 8192, 8328, 8448
    L_W = 16384

    a(f"v_mov_b32 v{vCA}, 0")
    a(f"v_mov_b32 v{vC1}, 1")
    a(f"v_lshrrev_b32 v{vG}, 4, v0")
    a(f"v_and_b32 v{vCc}, 15, v0")
    a(f"v_lshlrev_b32 v{vKO}, 8, v{vCc}")
    a(f"v_lshl_add_u32 v{vKO}, v{vG}, 4, v{vKO}")
    a(f"v_lshlrev_b32 v{vVO}, 4, v{vCc}")
    a(f"v_lshl_add_u32 v{vVO}, v{vG}, 10, v{vVO}")
    a(f"v_and_b32 v{vT}, 1, v{vG}")
    a(f"v_lshrrev_b32 v{vT+1}, 1, v{vG}")
    a(f"v_lshlrev_b32 v{vLD}, 5, v{vCc}")
    a(f"v_lshl_add_u32 v{vLD}, v{vT}, 3, v{vLD}")
    a(f"v_lshl_add_u32 v{vLD}, v{vT+1}, 4, v{vLD}")
    a("s_lshl_b32 s61, s3, 9")
    a(f"v_add_u32 v{vLD}, s61, v{vLD}")
    a("s_lshl_b32 s85, s63, 5")
    a("s_add_u32 s85, s85, s62")
    a("s_lshl_b32 s60, s85, 21")
    a("s_lshl_b32 s71, s3, 14")
    a(f"s_add_u32 s71, s71, {L_W}")
    sFF, sB0 = 88, 89
    a(f"s_mov_b32 s{sB0}, {4*NT}")
    sOFF = 72
    sWP, sTMP = 86, 87
    a(f"s_mov_b32 s{sWP}, 0")
    a("s_mov_b32 s84, 0")
    a("s_mov_b32 s82, 0")
    a("s_waitcnt lgkmcnt(0)")
    def srd(d, p, size):
        a(f"s_mov_b32 s{d}, s{p}")
        a(f"s_mov_b32 s{d+1}, s{p+1}")
        a(f"s_mov_b32 s{d+2}, 0x{size:x}")
        a(f"s_mov_b32 s{d+3}, 0x00020000")
    SX, SWQ, SK, SV, SWO, SWS, SW1, SW2 = 28, 32, 36, 40, 44, 48, 52, 56
    srd(SX, 4, 2048)
    srd(SWQ, 10, 512 * 4096 * 2)
    srd(SK, 6, 128 << 20)
    srd(SV, 8, 128 << 20)
    srd(SWO, 12, 4096 * 512 * 2)
    srd(SWS, 26, WS_BYTES)
    srd(SW1, 16, 512 * 1792 * 2)
    srd(SW2, 18, 1792 * 512 * 2)
    sR0, sB2, sNTL = 8, 9, 10
    rem = 128 - 4 * R0
    e1 = -(-rem // 3); e2 = -(-(rem - e1) // 2); e3 = rem - e1 - e2
    a("s_cmp_lt_u32 s85, 56")
    a("s_cbranch_scc1 L1_ffngrp")
    a(f"s_mov_b32 s{sR0}, 32"); a(f"s_mov_b32 s{sB2}, 0"); a(f"s_mov_b32 s{sNTL}, 128"); a(f"s_mov_b32 s{sFF}, 0")
    a("s_branch L1_mapdone")
    a.label("L1_ffngrp")
    a(f"s_mov_b32 s{sR0}, {R0}")
    a(f"s_mov_b32 s{sB2}, {4*R0}"); a(f"s_mov_b32 s{sNTL}, {4*(R0+e1)}")
    a("s_cmp_eq_u32 s64, 2")
    a(f"s_cselect_b32 s{sB2}, {4*R0+e1}, s{sB2}"); a(f"s_cselect_b32 s{sNTL}, {4*(R0+e2)}, s{sNTL}")
    a("s_cmp_eq_u32 s64, 3")
    a(f"s_cselect_b32 s{sB2}, {4*R0+e1+e2}, s{sB2}"); a(f"s_cselect_b32 s{sNTL}, {4*(R0+e3)}, s{sNTL}")
    a("s_cmp_eq_u32 s64, 0")
    a(f"s_cselect_b32 s{sNTL}, {4*R0}, s{sNTL}")
    a(f"s_cselect_b32 s{sFF}, 1, 0")
    a.label("L1_mapdone")
    def tau_to_off(src, dst):
        a(f"s_lshr_b32 s12, s{src}, 2")
        a("s_lshl_b32 s13, s12, 2")
        a("s_add_u32 s13, s13, s64")
        a(f"s_sub_u32 s14, s12, s{sR0}")
        a(f"s_add_u32 s14, s14, s{sB2}")
        a(f"s_cmp_lt_u32 s12, s{sR0}")
        a("s_cselect_b32 s13, s13, s14")
        a("s_lshl_b32 s13, s13, 14")
        a(f"s_and_b32 s12, s{src}, 3")
        a("s_lshl_b32 s12, s12, 12")
        a("s_add_u32 s13, s13, s12")
        a("s_add_u32 s13, s13, s60")
        a(f"s_cmp_lt_u32 s{src}, s{sNTL}")
        a(f"s_cselect_b32 s{dst}, s13, 0x{OOB:x}")

    def issue_K(seq, buf, pat="c", slot=None):
        if slot is None: slot = seq % U
        for j in range(4):
            r = KB(buf) + 4 * j
            if pat == "c":
                a.vm(f"buffer_load_dwordx4 v[{r}:{r+3}], v{vVO}, s[{SK}:{SK+3}], s{sOFF + slot} offen offset:{j*256} {pol_kv}", f"K{seq}")
            else:
                a.vm(f"buffer_load_dwordx4 v[{r}:{r+3}], v{vKO}, s[{SK}:{SK+3}], s{sOFF + slot} offen offset:{j*64} {pol_kv}", f"K{seq}")
    def issue_V(seq, buf, slot=None):
        if slot is None: slot = seq % U
        for r_ in range(4):
            r = VB(buf) + 4 * r_
            a.vm(f"buffer_load_dwordx4 v[{r}:{r+3}], v{vVO}, s[{SV}:{SV+3}], s{sOFF + slot} offen offset:{r_*256} {pol_kv}", f"V{seq}")

    vGR = vT + 15
    def grab_issue():
        a("s_mov_b64 exec, 1")
        a(f"ds_add_rtn_u32 v{vGR}, v{vCA}, v{vC1} offset:{L_CNT}")
        a("s_mov_b64 exec, -1")
    L_LOG = 12544
    vLG = NV1 - 1
    def grab_resolve(seq):
        a("s_waitcnt lgkmcnt(0)")
        a(f"v_readfirstlane_b32 s61, v{vGR}")
        if stamp:
            a(f"v_mov_b32 v{vT+12}, s61")
            a(f"v_mov_b32 v{vT+13}, s100")
            a(f"ds_write_b64 v{vLG}, v[{vT+12}:{vT+13}] offset:{L_LOG}")
            a(f"v_add_u32 v{vLG}, 8, v{vLG}")
            a("s_memrealtime s[100:101]")
        tau_to_off(61, sOFF + seq % U)

    def reduce_scatter8(regs):
        a("s_nop 2")
        for i in range(4):
            a(f"v_permlane32_swap_b32 v{regs[i]}, v{regs[i+4]}")
        for i in range(4):
            a(f"v_add_f32 v{regs[i]}, v{regs[i]}, v{regs[i+4]}")
        a("s_nop 1")
        for i in range(2):
            a(f"v_permlane16_swap_b32 v{regs[i]}, v{regs[i+2]}")
        for i in range(2):
            a(f"v_add_f32 v{regs[i]}, v{regs[i]}, v{regs[i+2]}")

    def qfrag():
        a(f"v_lshlrev_b32 v{vT}, 3, v0")
        for w in range(4):
            a(f"ds_read_b64 v[{vQ+2*w}:{vQ+2*w+1}], v{vT} offset:{L_QP + w*512}")
        a("s_lshl_b32 s61, s3, 8")
        a(f"v_lshlrev_b32 v{vT+1}, 2, v0")
        a(f"v_add_u32 v{vT+1}, s61, v{vT+1}")
        a(f"v_lshlrev_b32 v{vT+2}, 4, v{vCc}")
        a(f"v_add_u32 v{vT+2}, s61, v{vT+2}")
        a(f"v_lshlrev_b32 v{vT+4}, 4, v{vG}")
        a(f"v_add_u32 v{vT+4}, s61, v{vT+4}")
        a("s_waitcnt lgkmcnt(0)")
        for (x, y) in ((0, 1), (2, 3), (0, 2)):
            a(f"v_add_f32 v{vQ+2*x}, v{vQ+2*x}, v{vQ+2*y}")
            a(f"v_add_f32 v{vQ+2*x+1}, v{vQ+2*x+1}, v{vQ+2*y+1}")
        a(f"v_cvt_pk_bf16_f32 v{vT+3}, v{vQ}, v{vQ+1}")
        a(f"ds_write_b32 v{vT+1}, v{vT+3} offset:{L_QB}")
        a("s_waitcnt lgkmcnt(0)")
        a(f"ds_read_b128 v[{vQc}:{vQc+3}], v{vT+2} offset:{L_QB}")
        for j in range(4):
            a(f"ds_read_b128 v[{vQ+4*j}:{vQ+4*j+3}], v{vT+4} offset:{L_QB + j*64}")
        a(f"v_mov_b32 v{vM}, 0x{f2u(-3.0e38):08x}")
        a(f"v_mov_b32 v{vL}, 0")
        for i in range(8):
            a(f"v_mov_b32 v{vO+i}, 0")
        a("s_waitcnt lgkmcnt(0)")

    def qk(kreg, S, pat="c"):
        if pat == "m":
            for j in range(4):
                c = "0" if j == 0 else f"v[{S}:{S+3}]"
                a(f"v_mfma_f32_16x16x32_bf16 v[{S}:{S+3}], v[{kreg+4*j}:{kreg+4*j+3}], v[{vQ+4*j}:{vQ+4*j+3}], {c}")
            a("s_nop 7")
            return
        for d in range(4):
            for r in range(4):
                c = "0" if d == 0 else f"v{S+r}"
                a(f"v_dot2_f32_bf16 v{S+r}, v{kreg+4*r+d}, v{vQc+d}, {c}")
        a("s_nop 0")
        for rr in (8, 4, 2, 1):
            for r in range(4):
                a(f"v_add_f32_dpp v{S+r}, v{S+r}, v{S+r} row_ror:{rr} row_mask:0xf bank_mask:0xf")

    mN, al, mc, ps, t1, t2, P01, P23 = vT, vT + 1, vT + 2, vT + 4, vT + 8, vT + 9, vT + 10, vT + 11
    pt = [vT + 12, vT + 13, vT + 14, vT + 3]
    def softmax_pv(S, vreg):
        if mimic:
            for h2 in range(2):
                a(f"v_cvt_pk_bf16_f32 v{t1}, v{S+2*h2}, v{S+2*h2+1}")
                a(f"v_lshlrev_b32 v{S+2*h2}, 16, v{t1}")
                a(f"v_and_b32 v{S+2*h2+1}, 0xffff0000, v{t1}")
                a(f"v_mul_f32 v{S+2*h2}, s68, v{S+2*h2}")
                a(f"v_mul_f32 v{S+2*h2+1}, s68, v{S+2*h2+1}")
                a(f"v_cvt_pk_bf16_f32 v{t1}, v{S+2*h2}, v{S+2*h2+1}")
                a(f"v_lshlrev_b32 v{S+2*h2}, 16, v{t1}")
                a(f"v_and_b32 v{S+2*h2+1}, 0xffff0000, v{t1}")
        a(f"v_max3_f32 v{mN}, v{S}, v{S+1}, v{vM}")
        a(f"v_max3_f32 v{mN}, v{S+2}, v{S+3}, v{mN}")
        a(f"v_sub_f32 v{al}, v{vM}, v{mN}")
        a(f"v_mul_f32 v{mc}, s{sC}, v{mN}")
        a(f"v_mul_f32 v{al}, s{sC}, v{al}")
        for i in range(4):
            a(f"v_fma_f32 v{ps+i}, v{S+i}, s{sC}, -v{mc}")
        a(f"v_exp_f32 v{al}, v{al}")
        for i in range(4):
            a(f"v_exp_f32 v{ps+i}, v{ps+i}")
        a(f"v_mov_b32 v{vM}, v{mN}")
        for i in range(8):
            a(f"v_mul_f32 v{vO+i}, v{al}, v{vO+i}")
        a(f"v_cvt_pk_bf16_f32 v{P01}, v{ps}, v{ps+1}")
        a(f"v_cvt_pk_bf16_f32 v{P23}, v{ps+2}, v{ps+3}")
        a(f"v_add_f32 v{t1}, v{ps}, v{ps+1}")
        a(f"v_add_f32 v{t2}, v{ps+2}, v{ps+3}")
        a(f"v_add_f32 v{t1}, v{t1}, v{t2}")
        a(f"v_fma_f32 v{vL}, v{vL}, v{al}, v{t1}")
        for pr, P in ((0, P01), (2, P23)):
            r0, r1 = vreg + 4 * pr, vreg + 4 * (pr + 1)
            for d in range(4):
                tl, th = pt[2 * (d & 1)], pt[2 * (d & 1) + 1]
                a(f"v_perm_b32 v{tl}, v{r1+d}, v{r0+d}, s{sSELLO}")
                a(f"v_perm_b32 v{th}, v{r1+d}, v{r0+d}, s{sSELHI}")
                a(f"v_dot2_f32_bf16 v{vO+2*d}, v{tl}, v{P}, v{vO+2*d}")
                a(f"v_dot2_f32_bf16 v{vO+2*d+1}, v{th}, v{P}, v{vO+2*d+1}")

    vWA = vW + 67
    def wo_setup():
        a(f"v_lshrrev_b32 v{vWA}, 3, v0")
        a(f"v_lshlrev_b32 v{vWA}, 10, v{vWA}")
        a(f"v_and_b32 v{vT+12}, 7, v0")
        a(f"v_lshl_add_u32 v{vWA}, v{vT+12}, 4, v{vWA}")
        a("s_lshl_b32 s83, s62, 17")
        a("s_lshl_b32 s61, s3, 7")
        a("s_add_u32 s83, s83, s61")
    def wo_piece(n, track):
        sl, i = n >> 4, n & 15
        if "wo" in abl: return
        a(f"s_add_u32 m0, s71, {sl*65536 + i*1024}")
        a(f"s_add_u32 s61, s83, {sl*512 + i*8192}")
        ins = f"buffer_load_dwordx4 v{vWA}, s[{SWO}:{SWO+3}], s61 offen lds {pol_w}"
        if track: a.vm(ins, "wo")
        else: a(ins)
    def wo_flag_set():
        a("s_lshl_b32 s61, s3, 2")
        a(f"v_mov_b32 v{vT+12}, s61")
        a(f"ds_write_b32 v{vT+12}, v{vC1} offset:{L_CNT+8}")
    def wo_flag_wait():
        n = npoll[0]; npoll[0] += 1
        a("s_sub_u32 s61, s3, 4")
        a("s_lshl_b32 s61, s61, 2")
        a(f"v_mov_b32 v{vT+1}, s61")
        a.label(f"L1_poll{n}")
        a(f"ds_read_b32 v{vT}, v{vT+1} offset:{L_CNT+8}")
        a("s_waitcnt lgkmcnt(0)")
        a(f"v_readfirstlane_b32 s61, v{vT}")
        a("s_cmp_eq_u32 s61, 1")
        a(f"s_cbranch_scc1 L1_polled{n}")
        a("s_sleep 8")
        a(f"s_branch L1_poll{n}")
        a.label(f"L1_polled{n}")
    npoll = [0]

    def BF(ks, ct): return vW + (ks * 4 + ct) * 4
    def wperm():
        a(f"v_lshrrev_b32 v{vT+12}, 2, v{vCc}")
        a(f"v_lshl_add_u32 v{vT+12}, v{vG}, 3, v{vT+12}")
        a(f"v_lshlrev_b32 v{vT+12}, 7, v{vT+12}")
        a(f"v_and_b32 v{vT+13}, 3, v{vCc}")
        a(f"v_lshl_add_u32 v{vT+12}, v{vT+13}, 3, v{vT+12}")
        a(f"v_add_u32 v{vT+12}, s71, v{vT+12}")
        for ks in range(4):
            for ct in range(4):
                for hh in range(2):
                    r = BF(ks, ct) + 2 * hh
                    a(f"ds_read_b64_tr_b16 v[{r}:{r+1}], v{vT+12} offset:{(32*ks + 4*hh)*128 + ct*32}")
        a("s_waitcnt lgkmcnt(0)")
        a(f"s_mov_b32 s{sWP}, 1")

    def young_tiles_issue(lo, n):
        for i in range(lo, n):
            if ypace and i >= ypace:
                a.wait_vm(f"V{i-ypace}")
            issue_K(i, i, "c", i)
            issue_V(i, i, i)
    def young_tiles_process(n):
        for i in range(n):
            a.wait_vm(f"K{i}")
            qk(KB(i), vS[0])
            a.wait_vm(f"V{i}")
            softmax_pv(vS[0], VB(i))

    def lds_init_barrier():
        a(f"s_add_u32 s61, s{sB0}, {4*NB}")
        a(f"v_mov_b32 v{vT+6}, s61")
        for i in range(7, 12):
            a(f"v_mov_b32 v{vT+i}, 0")
        a(f"ds_write_b64 v{vCA}, v[{vT+6}:{vT+7}] offset:{L_CNT}")
        a(f"ds_write_b128 v{vCA}, v[{vT+8}:{vT+11}] offset:{L_CNT+8}")
        a("s_waitcnt lgkmcnt(0)")
        a("s_barrier")
    def q_wait():
        n = npoll[0]; npoll[0] += 1
        a.label(f"L1_poll{n}")
        a(f"ds_read_b32 v{vT}, v{vCA} offset:{L_CNT+4}")
        a("s_waitcnt lgkmcnt(0)")
        a(f"v_readfirstlane_b32 s61, v{vT}")
        a("s_cmp_ge_u32 s61, 4")
        a(f"s_cbranch_scc1 L1_polled{n}")
        a("s_sleep 1")
        a(f"s_branch L1_poll{n}")
        a.label(f"L1_polled{n}")
    a("s_cmp_lt_u32 s3, 4")
    a("s_cbranch_scc1 L1_pathA")
    a.q = []
    a(f"s_setprio {yprio}")
    if cpf:
        a("s_cmp_lg_u32 s3, 7")
        a("s_cbranch_scc1 L1_nocpf")
        a("s_getpc_b64 s[12:13]")
        a.label("L1_pcref")
        a("s_sub_u32 s12, s12, L1_pcref-attn_kernel")
        a("s_subb_u32 s13, s13, 0")
        a("s_lshr_b32 s61, s2, 3")
        a("s_lshl_b32 s61, s61, 11")
        a(f"v_lshlrev_b32 v{vT}, 7, v0")
        a(f"v_add_u32 v{vT}, s61, v{vT}")
        a("s_mov_b32 s61, L2_codeend-attn_kernel")
        a(f"v_cmp_gt_u32 vcc, s61, v{vT}")
        a("s_mov_b64 s[14:15], 0xffff")
        a("s_and_b64 vcc, vcc, s[14:15]")
        a("s_and_saveexec_b64 s[14:15], vcc")
        a("s_cbranch_execz L1_cpf_skip")
        a(f"global_load_dword v{vLG}, v{vT}, s[12:13]")
        a.label("L1_cpf_skip")
        a("s_mov_b64 exec, s[14:15]")
        a.label("L1_nocpf")
    a("s_sub_u32 s61, s3, 4")
    a(f"s_mul_i32 s61, s61, {NT}")
    a("s_mov_b32 s15, s61")
    tau_to_off(15, sOFF)
    if ystamp:
        a("s_memrealtime s[100:101]")
    young_tiles_issue(0, 1)
    for k in range(1, NT):
        a("s_add_u32 s15, s15, 1")
        tau_to_off(15, sOFF + k)
    lds_init_barrier()
    young_tiles_issue(1, NT)
    if ystamp:
        qsave = list(a.q)
        for i in range(NT):
            a.wait_vm(f"V{i}")
            if i >= NT - 4: a(f"s_memrealtime s[{92+2*(i-NT+4)}:{93+2*(i-NT+4)}]")
    q_wait()
    qfrag()
    if not ystamp: STAMP(1)
    young_tiles_process(NT)
    a("s_cmp_eq_u32 s3, 4")
    a("s_cbranch_scc0 L1_yexit")
    a(f"s_cmp_eq_u32 s{sFF}, 1")
    a("s_cbranch_scc0 L1_yexit")
    if "ffn" in abl: a("s_branch L1_yexit")
    a.q = []
    L_H = 147456
    hW, hX, hA, hT = vR, vR + 96, vW, vT
    hR, hC, hO1, hO2 = vW + 16, vW + 17, vW + 18, vW + 19
    a(f"v_lshrrev_b32 v{hR}, 2, v0")
    a(f"v_and_b32 v{hC}, 3, v0")
    a("s_mov_b32 s61, 114688")
    a(f"v_mul_lo_u32 v{hO1}, v{hR}, s61")
    a(f"v_lshl_add_u32 v{hO1}, v{hC}, 4, v{hO1}")
    a(f"v_lshlrev_b32 v{hT}, 6, v{hR}")
    a(f"v_lshlrev_b32 v{hO2}, 4, v0")
    for b in range(2):
        for k in range(4):
            r = hX + b * 16 + 4 * k
            a.vm(f"buffer_load_dwordx4 v[{r}:{r+3}], v{hT}, s[{SX}:{SX+3}], 0 offen offset:{b*1024 + k*16}", "hx")
    a("s_lshl_b32 s69, s85, 6")
    a("s_lshl_b32 s70, s85, 15")
    def h_issue_w1(ph):
        buf = ph % 3
        for i in range(8 * ph, 8 * ph + 8):
            if i & 1 == 0:
                a(f"s_add_u32 s61, s69, {i*3584}")
            r = hW + buf * 32 + (i & 7) * 4
            a.vm(f"buffer_load_dwordx4 v[{r}:{r+3}], v{hO1}, s[{SW1}:{SW1+3}], s61 offen offset:{(i&1)*3584} {pol_w}", f"w1_{ph}")
    def h_issue_w2(ph):
        buf = (ph + 4) % 3
        for j in range(8 * ph, 8 * ph + 8):
            if j & 3 == 0:
                a(f"s_add_u32 s61, s70, {j*1024}")
            r = hW + buf * 32 + (j & 7) * 4
            a.vm(f"buffer_load_dwordx4 v[{r}:{r+3}], v{hO2}, s[{SW2}:{SW2+3}], s61 offen offset:{(j&3)*1024} {pol_w}", f"w2_{ph}")
    h_issue_w1(0); h_issue_w1(1); h_issue_w1(2)
    for i in range(16):
        a(f"v_mov_b32 v{hA+i}, 0")
    def h_compute(buf, xs):
        for p in range(4):
            r0, r1 = hW + buf * 32 + 8 * p, hW + buf * 32 + 8 * p + 4
            for d in range(4):
                tl, th = hT + 2 + 2 * (d & 1), hT + 3 + 2 * (d & 1)
                a(f"v_perm_b32 v{tl}, v{r1+d}, v{r0+d}, s{sSELLO}")
                a(f"v_perm_b32 v{th}, v{r1+d}, v{r0+d}, s{sSELHI}")
                for b in range(2):
                    a(f"v_dot2_f32_bf16 v{hA+b*8+2*d}, v{tl}, v{xs(b,p)}, v{hA+b*8+2*d}")
                    a(f"v_dot2_f32_bf16 v{hA+b*8+2*d+1}, v{th}, v{xs(b,p)}, v{hA+b*8+2*d+1}")
    a.wait_vm("hx")
    for ph in range(4):
        a.wait_vm(f"w1_{ph}")
        h_compute(ph % 3, lambda b, p, ph=ph: hX + b * 16 + ph * 4 + p)
        if ph == 0:
            h_issue_w1(3)
        else:
            h_issue_w2(ph - 1)
    a(f"v_lshlrev_b32 v{hT}, 8, v{hR}")
    a(f"v_lshl_add_u32 v{hT}, v{hC}, 5, v{hT}")
    a(f"v_add_u32 v{hT}, {L_H}, v{hT}")
    a("s_nop 2")
    for b in range(2):
        a(f"ds_write_b128 v{hT}, v[{hA+b*8}:{hA+b*8+3}] offset:{b*128}")
        a(f"ds_write_b128 v{hT}, v[{hA+b*8+4}:{hA+b*8+7}] offset:{b*128 + 16}")
    a(f"v_lshlrev_b32 v{hT+1}, 2, v0")
    a(f"v_add_u32 v{hT+1}, {L_H}, v{hT+1}")
    a("s_waitcnt lgkmcnt(0)")
    for rr in range(16):
        a(f"ds_read_b32 v{hX+rr}, v{hT+1} offset:{rr*256}")
    a("s_waitcnt lgkmcnt(0)")
    for st in (1, 2, 4, 8):
        for i in range(0, 16, 2 * st):
            a(f"v_add_f32 v{hX+i}, v{hX+i}, v{hX+i+st}")
    hv, e = hX, hX + 1
    a(f"v_cvt_pk_bf16_f32 v{hv}, v{hv}, v{hv}")
    a(f"v_lshlrev_b32 v{hv}, 16, v{hv}")
    a(f"v_mul_f32 v{e}, 0x{f2u(-LOG2E):08x}, v{hv}")
    a(f"v_exp_f32 v{e}, v{e}")
    a("s_nop 0")
    a(f"v_add_f32 v{e}, 1.0, v{e}")
    a(f"v_rcp_f32 v{e}, v{e}")
    a("s_nop 0")
    a(f"v_mul_f32 v{hv}, v{hv}, v{e}")
    a(f"v_cvt_pk_bf16_f32 v{hv}, v{hv}, v{hv}")
    a(f"v_lshlrev_b32 v{hT+1}, 1, v0")
    a(f"v_add_u32 v{hT+1}, {L_H+4096}, v{hT+1}")
    a(f"ds_write_b16 v{hT+1}, v{hv}")
    a(f"v_mov_b32 v{hT+1}, {L_H+4096}")
    a("s_waitcnt lgkmcnt(0)")
    for k in range(8):
        a(f"ds_read_b128 v[{hX+4*k}:{hX+4*k+3}], v{hT+1} offset:{16*k}")
    for i in range(16):
        a(f"v_mov_b32 v{hA+i}, 0")
    a("s_waitcnt lgkmcnt(0)")
    for ph in range(4):
        a.wait_vm(f"w2_{ph}")
        h_compute((ph + 4) % 3, lambda b, p, ph=ph: hX + b * 16 + ph * 4 + p)
        if ph == 0:
            h_issue_w2(3)
    fK = vR + 64
    a("s_nop 2")
    for i in range(16):
        a(f"v_mov_b32 v{fK+i}, v{hA+i}")
    a(f"v_lshrrev_b32 v{fK+16}, 1, v0")
    a(f"v_lshlrev_b32 v{fK+16}, 12, v{fK+16}")
    a(f"v_and_b32 v{fK+17}, 1, v0")
    a(f"v_lshl_add_u32 v{fK+16}, v{fK+17}, 5, v{fK+16}")
    a("s_mov_b32 s84, 1")
    a.label("L1_yexit")
    if not ystamp: STAMP(2)
    wo_flag_wait()
    wperm()
    a("s_branch L1_comb")

    a.q = []
    a.label("L1_pathA")
    a(f"s_setprio {oprio}")
    vX = vW
    a(f"v_lshlrev_b32 v{vT}, 6, v{vG}")
    a("s_lshl_b32 s61, s63, 10")
    a("s_lshl_b32 s69, s3, 8")
    a("s_add_u32 s61, s61, s69")
    for k in range(4):
        a.vm(f"buffer_load_dwordx4 v[{vX+4*k}:{vX+4*k+3}], v{vT}, s[{SX}:{SX+3}], s61 offen offset:{16*k}", "x")
    a(f"v_lshlrev_b32 v{vT+1}, 4, v{vCc}")
    a(f"v_lshl_add_u32 v{vT+1}, v{vG}, 18, v{vT+1}")
    a(f"s_add_u32 s61, s{sB0}, s3")
    a("s_mov_b32 s15, s61")
    a("s_lshl_b32 s83, s3, 20")
    a("s_lshl_b32 s69, s62, 8")
    a("s_add_u32 s83, s83, s69")
    a("s_lshl_b32 s70, s3, 15")
    a(f"s_add_u32 s70, s70, {L_W}")
    ntile = 0
    for i in range(32):
        a(f"s_add_u32 m0, s70, {i*1024}")
        a(f"s_add_u32 s61, s83, {i*8192}")
        if "wq" in abl and i % 8 != 7:
            a.q.append(f"wq{i}"); a.q.pop()
        else:
            a.vm(f"buffer_load_dwordx4 v{vT+1}, s[{SWQ}:{SWQ+3}], s61 offen lds", f"wq{i}")
        if i == 3:
            lds_init_barrier()
        if (i + 1) % wq_chunk == 0 and ntile < NB:
            tau_to_off(15, sOFF + ntile)
            a("s_add_u32 s15, s15, 4")
            issue_K(ntile, ntile); issue_V(ntile, ntile); ntile += 1
    while ntile < NB:
        tau_to_off(15, sOFF + ntile)
        a("s_add_u32 s15, s15, 4")
        issue_K(ntile, ntile); issue_V(ntile, ntile); ntile += 1
    acc = [vS[0] + i for i in range(4)] + [vS[1] + i for i in range(4)]
    for i in range(8):
        a(f"v_mov_b32 v{acc[i]}, 0")
    vWL = vT + 6
    a(f"v_lshlrev_b32 v{vWL}, 4, v0")
    a(f"v_add_u32 v{vWL}, s70, v{vWL}")
    def wqr(p): return vW + 16 + 8 * (p & 3)
    saved_q = None
    def wq_read(p):
        a.wait_vm("x", f"wq{2*p+1}")
        r = wqr(p)
        a(f"ds_read_b128 v[{r}:{r+3}], v{vWL} offset:{2*p*1024}")
        a(f"ds_read_b128 v[{r+4}:{r+7}], v{vWL} offset:{(2*p+1)*1024}")
    for p in range(3):
        wq_read(p)
    for p in range(16):
        rem = min(16 - 1 - p, 2)
        a(f"s_waitcnt lgkmcnt({2*rem})")
        r0 = wqr(p); r1 = r0 + 4
        for d in range(4):
            tl, th = vT + 2 + 2 * (d & 1), vT + 3 + 2 * (d & 1)
            a(f"v_perm_b32 v{tl}, v{r1+d}, v{r0+d}, s{sSELLO}")
            a(f"v_perm_b32 v{th}, v{r1+d}, v{r0+d}, s{sSELHI}")
            a(f"v_dot2_f32_bf16 v{acc[2*d]}, v{tl}, v{vX+p}, v{acc[2*d]}")
            a(f"v_dot2_f32_bf16 v{acc[2*d+1]}, v{th}, v{vX+p}, v{acc[2*d+1]}")
        if p + 3 < 16:
            wq_read(p + 3)
    reduce_scatter8(acc)
    a(f"ds_write_b64 v{vLD}, v[{acc[0]}:{acc[1]}] offset:{L_QP}")
    a("s_waitcnt lgkmcnt(0)")
    a("s_mov_b64 exec, 1")
    a(f"ds_add_u32 v{vCA}, v{vC1} offset:{L_CNT+4}")
    a("s_mov_b64 exec, -1")
    q_wait()
    qfrag()
    a("s_setprio 0")
    STAMP(1)
    if clk: a("s_memtime s[16:17]")
    if stamp:
        a("s_lshl_b32 s61, s3, 9")
        a(f"v_mov_b32 v{vLG}, s61")
        a("s_memrealtime s[100:101]")
    grab_issue()
    wo_setup()
    npeel = -(-32 // (U * wo_per_step))
    def patof(seq):
        if seq < NB: return "c"
        if seq < npeel * U: return kpeel[seq % len(kpeel)]
        return kpat[(seq % U) % len(kpat)]
    assert U % len(kpat) == 0
    piece = 0
    for ps_ in range(npeel):
        for k in range(U):
            seq = ps_ * U + k
            buf = k % NB
            a.wait_vm(f"K{seq}")
            qk(KB(buf), vS[0], patof(seq))
            a.wait_vm(f"V{seq}")
            softmax_pv(vS[0], VB(buf))
            a(f"s_cmp_eq_u32 s{sOFF + (k+1) % U}, 0x{OOB:x}")
            a("s_cbranch_scc1 L1_exit")
            grab_resolve(k + NB)
            grab_issue()
            issue_K(seq + NB, buf, patof(seq + NB))
            issue_V(seq + NB, buf)
            for _ in range(wo_per_step):
                if piece < 32:
                    wo_piece(piece, True); piece += 1
    a("s_mov_b32 s82, 1")
    a.label("L1_body")
    for k in range(U):
        buf = k % NB
        a(f"s_waitcnt vmcnt({8*NB-4})")
        qk(KB(buf), vS[0], patof(npeel * U + k))
        a(f"s_waitcnt vmcnt({8*(NB-1)})")
        softmax_pv(vS[0], VB(buf))
        a(f"s_cmp_eq_u32 s{sOFF + (k+1) % U}, 0x{OOB:x}")
        a("s_cbranch_scc1 L1_exit")
        grab_resolve(k + NB)
        grab_issue()
        issue_K(k + NB, buf, patof(npeel * U + k + NB))
        issue_V(k + NB, buf)
    a(f"s_cmp_eq_u32 s{sWP}, 1")
    a("s_cbranch_scc1 L1_body")
    a("s_waitcnt lgkmcnt(0)")
    wo_flag_set()
    wperm()
    a("s_branch L1_body")
    a.label("L1_exit")
    STAMP(2)
    if clk: a("s_memtime s[18:19]")
    a(f"s_cmp_eq_u32 s{sWP}, 1")
    a("s_cbranch_scc1 L1_comb")
    a("s_cmp_eq_u32 s82, 1")
    a("s_cbranch_scc1 L1_wo_issued")
    for n in range(32):
        wo_piece(n, False)
    a.label("L1_wo_issued")
    a("s_waitcnt vmcnt(0) lgkmcnt(0)")
    wo_flag_set()
    wperm()
    a.label("L1_comb")

    x1, x2, MW, f = vT, vT + 1, vT + 2, vT + 3
    a(f"v_mov_b32 v{x1}, v{vM}")
    a(f"v_mov_b32 v{x2}, v{vM}")
    a("s_nop 1")
    a(f"v_permlane32_swap_b32 v{x1}, v{x2}")
    a(f"v_max_f32 v{x1}, v{x1}, v{x2}")
    a(f"v_mov_b32 v{x2}, v{x1}")
    a("s_nop 1")
    a(f"v_permlane16_swap_b32 v{x1}, v{x2}")
    a(f"v_max_f32 v{MW}, v{x1}, v{x2}")
    a(f"v_sub_f32 v{f}, v{vM}, v{MW}")
    a(f"v_mul_f32 v{f}, s{sC}, v{f}")
    a(f"v_exp_f32 v{f}, v{f}")
    a("s_nop 0")
    a(f"v_mul_f32 v{x1}, v{f}, v{vL}")
    a(f"v_mul_f32 v{x2}, v{f}, v{vL}")
    for i in range(8):
        a(f"v_mul_f32 v{vO+i}, v{f}, v{vO+i}")
    a(f"v_permlane32_swap_b32 v{x1}, v{x2}")
    a(f"v_add_f32 v{x1}, v{x1}, v{x2}")
    a(f"v_mov_b32 v{x2}, v{x1}")
    a("s_nop 1")
    a(f"v_permlane16_swap_b32 v{x1}, v{x2}")
    a(f"v_add_f32 v{MW+1}, v{x1}, v{x2}")
    reduce_scatter8([vO + i for i in range(8)])
    a(f"ds_write_b64 v{vLD}, v[{vO}:{vO+1}] offset:{L_OP}")
    a("s_lshl_b32 s61, s3, 3")
    a(f"v_mov_b32 v{x1}, s61")
    a(f"ds_write_b64 v{x1}, v[{MW}:{MW+1}] offset:{L_ML}")
    aOP, aPW, aPR, aY = vM, vL, vS[0], vKO
    a(f"v_lshlrev_b32 v{aOP}, 3, v0")
    a("s_lshl_b32 s61, s3, 9")
    a(f"s_add_u32 s61, s61, {L_P}")
    a(f"v_lshlrev_b32 v{aPW}, 2, v0")
    a(f"v_add_u32 v{aPW}, s61, v{aPW}")
    a(f"v_and_b32 v{aPR}, 1, v{vCc}")
    a(f"v_lshlrev_b32 v{aPR}, 8, v{aPR}")
    a(f"v_lshl_add_u32 v{aPR}, v{vG}, 4, v{aPR}")
    a(f"v_add_u32 v{aPR}, s61, v{aPR}")
    a(f"v_and_b32 v{x2}, 2, v{vCc}")
    a(f"v_cmp_eq_u32 s[16:17], 0, v{x2}")
    a(f"v_lshlrev_b32 v{aY}, 2, v{vCc}")
    a(f"v_lshl_add_u32 v{aY}, v{vG}, 13, v{aY}")
    for gg in range(1, 4):
        a(f"v_cmp_eq_u32 s[{16+2*gg}:{17+2*gg}], {gg}, v{vG}")
    a("s_lshl_b32 s61, s63, 5")
    a("s_lshl_b32 s69, s3, 2")
    a("s_add_u32 s61, s61, s69")
    a("s_lshl_b32 s61, s61, 13")
    a("s_lshl_b32 s69, s62, 2")
    a("s_add_u32 s69, s69, s64")
    a("s_lshl_b32 s70, s69, 6")
    a("s_add_u32 s60, s61, s70")
    a("s_waitcnt vmcnt(0)")
    for i in range(16):
        a(f"v_mov_b32 v{vR+16+i}, 0")
    a("s_waitcnt lgkmcnt(0)")
    a("s_barrier")
    if ystamp:
        a("s_cmp_ge_u32 s3, 4"); a("s_cbranch_scc1 L1_ns4")
    STAMP(4)
    if ystamp: a.label("L1_ns4")
    a(f"v_mov_b32 v{x1}, 0")
    for i in range(4):
        a(f"ds_read_b128 v[{vQ+4*i}:{vQ+4*i+3}], v{x1} offset:{L_ML + 16*i}")
    op = [vR + 2 * w for w in range(8)]
    for w in range(8):
        a(f"ds_read_b64 v[{op[w]}:{op[w]+1}], v{aOP} offset:{L_OP + w*512}")
    a("s_waitcnt lgkmcnt(8)")
    Mt, Lt = vT + 4, vT + 5
    a(f"v_max3_f32 v{Mt}, v{vQ}, v{vQ+2}, v{vQ+4}")
    a(f"v_max3_f32 v{Mt}, v{vQ+6}, v{vQ+8}, v{Mt}")
    a(f"v_max3_f32 v{Mt}, v{vQ+10}, v{vQ+12}, v{Mt}")
    a(f"v_max_f32 v{Mt}, v{vQ+14}, v{Mt}")
    for w in range(8):
        a(f"v_sub_f32 v{vQ+2*w}, v{vQ+2*w}, v{Mt}")
    for w in range(8):
        a(f"v_mul_f32 v{vQ+2*w}, s{sC}, v{vQ+2*w}")
    for w in range(8):
        a(f"v_exp_f32 v{vQ+2*w}, v{vQ+2*w}")
    a("s_waitcnt lgkmcnt(0)")
    o0, o1, hi, lo = vT + 6, vT + 7, vT + 8, vT + 9
    a(f"v_mul_f32 v{o0}, v{vQ}, v{op[0]}")
    a(f"v_mul_f32 v{o1}, v{vQ}, v{op[0]+1}")
    for w in range(1, 8):
        a(f"v_fma_f32 v{o0}, v{vQ+2*w}, v{op[w]}, v{o0}")
        a(f"v_fma_f32 v{o1}, v{vQ+2*w}, v{op[w]+1}, v{o1}")
    a(f"v_cvt_pk_bf16_f32 v{hi}, v{o0}, v{o1}")
    a(f"v_lshlrev_b32 v{x1}, 16, v{hi}")
    a(f"v_and_b32 v{x2}, 0xffff0000, v{hi}")
    a(f"v_sub_f32 v{o0}, v{o0}, v{x1}")
    a(f"v_sub_f32 v{o1}, v{o1}, v{x2}")
    a(f"v_cvt_pk_bf16_f32 v{lo}, v{o0}, v{o1}")
    a(f"ds_write_b32 v{aPW}, v{hi}")
    a(f"ds_write_b32 v{aPW}, v{lo} offset:256")
    a(f"v_mul_f32 v{Lt}, v{vQ}, v{vQ+1}")
    for w in range(1, 8):
        a(f"v_fma_f32 v{Lt}, v{vQ+2*w}, v{vQ+2*w+1}, v{Lt}")
    a("s_waitcnt lgkmcnt(0)")
    AF = vR + 16
    a("s_mov_b64 exec, s[16:17]")
    for ks in range(4):
        a(f"ds_read_b128 v[{AF+4*ks}:{AF+4*ks+3}], v{aPR} offset:{ks*64}")
    a("s_mov_b64 exec, -1")
    DA = vR + 32
    for ks in range(4):
        a(f"s_waitcnt lgkmcnt({3-ks})")
        for ct in range(4):
            c = "0" if ks == 0 else f"v[{DA+4*ct}:{DA+4*ct+3}]"
            a(f"v_mfma_f32_16x16x32_bf16 v[{DA+4*ct}:{DA+4*ct+3}], v[{AF+4*ks}:{AF+4*ks+3}], v[{BF(ks,ct)}:{BF(ks,ct)+3}], {c}")
    a("s_nop 7")
    ac = [vO + i for i in range(4)]
    for ct in range(4):
        a(f"v_add_f32 v{ac[ct]}, v{DA+4*ct}, v{DA+4*ct+1}")
    for gg in range(1, 4):
        a(f"v_cndmask_b32 v{ac[0]}, v{ac[0]}, v{ac[gg]}, s[{16+2*gg}:{17+2*gg}]")
    a(f"buffer_store_dword v{ac[0]}, v{aY}, s[{SWS}:{SWS+3}], s60 offen")
    if ystamp:
        a("s_cmp_ge_u32 s3, 4"); a("s_cbranch_scc1 L1_ns3")
    STAMP(3)
    if ystamp: a.label("L1_ns3")
    if clk:
        a("s_waitcnt lgkmcnt(0)")
        a("s_mov_b32 s98, s16"); a("s_mov_b32 s100, s18")
    STAMP_STORE(6, ["s_lshl_b32 s61, s2, 4", "s_add_u32 s61, s61, s3", "s_lshl_b32 s61, s61, 5"], SWS, vQ)
    if stamp:
        a("s_cmp_ge_u32 s3, 4")
        a("s_cbranch_scc1 L1_nolog")
        a("s_lshl_b32 s61, s3, 9")
        a(f"v_lshlrev_b32 v{vQ}, 3, v0")
        a(f"v_add_u32 v{vQ+1}, s61, v{vQ}")
        a(f"ds_read_b64 v[{vQ+2}:{vQ+3}], v{vQ+1} offset:{L_LOG}")
        a("s_lshl_b32 s70, s2, 11")
        a("s_add_u32 s61, s61, s70")
        a(f"s_add_u32 s61, s61, {WS_ST + 262144}")
        a("s_waitcnt lgkmcnt(0)")
        a(f"buffer_store_dwordx2 v[{vQ+2}:{vQ+3}], v{vQ}, s[{SWS}:{SWS+3}], s61 offen")
        a.label("L1_nolog")
    a("s_cmp_eq_u32 s84, 1")
    a("s_cbranch_scc0 L1_noffn")
    a("s_lshl_b32 s61, s85, 6")
    a(f"s_add_u32 s61, s61, {WS_BP}")
    a(f"s_add_u32 s70, s61, {32*64*64}")
    for b in range(2):
        so = "s61" if b == 0 else "s70"
        a(f"buffer_store_dwordx4 v[{fK+b*8}:{fK+b*8+3}], v{fK+16}, s[{SWS}:{SWS+3}], {so} offen")
        a(f"buffer_store_dwordx4 v[{fK+b*8+4}:{fK+b*8+7}], v{fK+16}, s[{SWS}:{SWS+3}], {so} offen offset:16")
    a.label("L1_noffn")
    a("s_cmp_lg_u32 s3, 0")
    a("s_cbranch_scc1 L1_done")
    a("s_lshl_b32 s61, s63, 7")
    a("s_add_u32 s61, s61, s69")
    a("s_lshl_b32 s61, s61, 3")
    a(f"s_add_u32 s61, s61, {WS_ML}")
    a(f"v_mov_b32 v{x1}, 0")
    a("v_cmp_eq_u32 vcc, 0, v0")
    a("s_and_saveexec_b64 s[70:71], vcc")
    assert Mt % 2 == 0 and Lt == Mt + 1
    a(f"buffer_store_dwordx2 v[{Mt}:{Lt}], v{x1}, s[{SWS}:{SWS+3}], s61 offen")
    a.label("L1_done")
    a("s_endpgm")

    a.q = []
    a.raw(".globl fin_kernel")
    a.raw(".p2align 8")
    a.raw(".type fin_kernel,@function")
    a.label("fin_kernel")
    a("s_cmp_ge_u32 s2, 64")
    a("s_cbranch_scc1 L2_done")
    STAMP(0)
    a("s_load_dwordx2 s[4:5], s[0:1], 0")
    a("s_load_dwordx8 s[20:27], s[0:1], 64")
    a("v_lshrrev_b32 v1, 6, v0")
    a("v_and_b32 v2, 15, v0")
    a("v_lshrrev_b32 v3, 4, v0")
    a("v_readfirstlane_b32 s3, v1")
    a("s_lshr_b32 s63, s2, 5")
    a("v_lshlrev_b32 v4, 2, v2")
    a("v_lshl_add_u32 v4, v3, 9, v4")
    a("v_lshlrev_b32 v5, 6, v3")
    a("v_lshlrev_b32 v6, 8, v3")
    a("v_lshl_add_u32 v6, v2, 2, v6")
    a("v_lshlrev_b32 v7, 2, v0")
    a("s_lshl_b32 s60, s2, 13")
    a("s_lshl_b32 s61, s63, 10")
    a(f"s_add_u32 s62, s61, {WS_ML}")
    a("s_lshl_b32 s64, s2, 12")
    a(f"s_add_u32 s64, s64, {WS_BP}")
    a("s_waitcnt lgkmcnt(0)")
    srd(SWS, 26, WS_BYTES)
    srd(SX, 4, 2048)
    srd(32, 20, 1024)
    srd(36, 22, 2048)
    ML = 24
    for i in range(4):
        a.vm(f"buffer_load_dwordx4 v[{ML+4*i}:{ML+4*i+3}], v5, s[{SWS}:{SWS+3}], s62 offen offset:{i*16}", "ml")
    Y = 16
    for i in range(8):
        a.vm(f"buffer_load_dword v{Y+i}, v4, s[{SWS}:{SWS+3}], s60 offen offset:{i*64}", "y")
    BP = 40
    for i in range(4):
        a(f"v_mov_b32 v{BP+i}, 0")
    a("v_cmp_gt_u32 vcc, 14, v3")
    a("s_and_saveexec_b64 s[70:71], vcc")
    for i in range(4):
        a.vm(f"buffer_load_dword v{BP+i}, v6, s[{SWS}:{SWS+3}], s64 offen offset:{i*64}", "bp")
    a("s_mov_b64 exec, s[70:71]")
    a.vm(f"buffer_load_dword v54, v7, s[{SX}:{SX+3}], s61 offen", "g")
    a.vm("buffer_load_dword v55, v7, s[32:35], 0 offen", "g")
    sC2 = 67
    a(f"s_mov_b32 s{sC2}, 0x{f2u(LOG2E if mimic else LOG2E * SCALE):08x}")
    a.wait_vm("ml")
    for hh in range(2):
        B = ML + hh * 8
        Mx, Ls = 8 + hh * 2, 9 + hh * 2
        a(f"v_max3_f32 v{Mx}, v{B}, v{B+2}, v{B+4}")
        a(f"v_max_f32 v{Mx}, v{B+6}, v{Mx}")
        for s_ in range(4):
            a(f"v_sub_f32 v{B+2*s_}, v{B+2*s_}, v{Mx}")
        for s_ in range(4):
            a(f"v_mul_f32 v{B+2*s_}, s{sC2}, v{B+2*s_}")
        for s_ in range(4):
            a(f"v_exp_f32 v{B+2*s_}, v{B+2*s_}")
        a("s_nop 0")
        a(f"v_mul_f32 v{Ls}, v{B}, v{B+1}")
        for s_ in range(1, 4):
            a(f"v_fma_f32 v{Ls}, v{B+2*s_}, v{B+2*s_+1}, v{Ls}")
        a(f"v_rcp_f32 v{Ls}, v{Ls}")
    a.wait_vm("y")
    for hh in range(2):
        B = ML + hh * 8
        Mx = 8 + hh * 2
        a(f"v_mul_f32 v{Mx}, v{B}, v{Y+hh*4}")
        for s_ in range(1, 4):
            a(f"v_fma_f32 v{Mx}, v{B+2*s_}, v{Y+hh*4+s_}, v{Mx}")
    a("v_mul_f32 v12, v8, v9")
    a("v_fma_f32 v12, v10, v11, v12")
    a.wait_vm("bp")
    a(f"v_add_f32 v13, v{BP}, v{BP+1}")
    a(f"v_add_f32 v14, v{BP+2}, v{BP+3}")
    a("v_add_f32 v13, v13, v14")
    a.wait_vm("g")
    a("v_lshlrev_b32 v56, 16, v54")
    a("v_and_b32 v57, 0xffff0000, v54")
    a("v_lshlrev_b32 v58, 16, v55")
    a("v_and_b32 v59, 0xffff0000, v55")
    a("v_mul_f32 v56, v56, v58")
    a("v_mul_f32 v57, v57, v59")
    a("v_cvt_pk_bf16_f32 v56, v56, v57")
    a("v_lshlrev_b32 v57, 16, v56")
    a("v_and_b32 v56, 0xffff0000, v56")
    a("v_add_f32 v14, v56, v57")
    a("v_permlane32_swap_b32 v12, v13")
    a("v_add_f32 v12, v12, v13")
    a("v_mov_b32 v13, v12")
    a("v_mov_b32 v15, v14")
    a("s_nop 0")
    a("v_permlane16_swap_b32 v12, v13")
    a("v_permlane32_swap_b32 v14, v15")
    a("v_add_f32 v12, v12, v13")
    a("v_add_f32 v14, v14, v15")
    a("v_mov_b32 v15, v14")
    a("s_nop 1")
    a("v_permlane16_swap_b32 v14, v15")
    a("v_add_f32 v14, v14, v15")
    for rr in (8, 4, 2, 1):
        a("s_nop 1")
        a(f"v_add_f32_dpp v14, v14, v14 row_ror:{rr} row_mask:0xf bank_mask:0xf")
    a("v_and_b32 v4, 63, v0")
    a("v_lshrrev_b32 v5, 5, v4")
    a("v_lshlrev_b32 v5, 6, v5")
    a("v_lshl_add_u32 v5, v2, 2, v5")
    a("s_lshl_b32 s61, s3, 7")
    a("v_add_u32 v5, s61, v5")
    a("ds_write_b32 v5, v12")
    a("s_lshl_b32 s61, s3, 2")
    a("v_mov_b32 v6, s61")
    a("ds_write_b32 v6, v14 offset:512")
    a("s_waitcnt lgkmcnt(0)")
    a("s_barrier")
    a("s_cmp_lg_u32 s3, 0")
    a("s_cbranch_scc1 L2_done")
    a("v_lshlrev_b32 v5, 2, v2")
    for w in range(4):
        a(f"ds_read_b32 v{16+w}, v5 offset:{w*128}")
        a(f"ds_read_b32 v{20+w}, v5 offset:{w*128+64}")
    a("v_mov_b32 v6, 0")
    a("ds_read_b128 v[24:27], v6 offset:512")
    a("s_waitcnt lgkmcnt(0)")
    a("v_add_f32 v16, v16, v17"); a("v_add_f32 v18, v18, v19"); a("v_add_f32 v16, v16, v18")
    a("v_add_f32 v20, v20, v21"); a("v_add_f32 v22, v22, v23"); a("v_add_f32 v20, v20, v22")
    a("v_add_f32 v24, v24, v25"); a("v_add_f32 v26, v26, v27"); a("v_add_f32 v24, v24, v26")
    def rbf(r):
        a(f"v_cvt_pk_bf16_f32 v{r}, v{r}, v{r}")
        a(f"v_lshlrev_b32 v{r}, 16, v{r}")
    rbf(16); rbf(20); rbf(24)
    a(f"v_mul_f32 v24, 0x{f2u(-LOG2E):08x}, v24")
    a("v_exp_f32 v24, v24")
    a("s_nop 0")
    a("v_add_f32 v24, 1.0, v24")
    a("v_rcp_f32 v24, v24")
    a("s_nop 0")
    rbf(24)
    a("v_sub_f32 v25, 1.0, v24")
    rbf(25)
    a("v_mul_f32 v16, v24, v16"); rbf(16)
    a("v_mul_f32 v20, v25, v20"); rbf(20)
    a("v_add_f32 v16, v16, v20")
    a("v_cvt_pk_bf16_f32 v16, v16, v16")
    a("s_lshl_b32 s61, s2, 5")
    a("v_lshlrev_b32 v5, 1, v2")
    a("v_cmp_gt_u32 vcc, 16, v0")
    a("s_and_saveexec_b64 s[70:71], vcc")
    a("buffer_store_short v16, v5, s[36:39], s61 offen")
    STAMP(1)
    STAMP_STORE(2, ["s_lshl_b32 s61, s2, 4", "s_add_u32 s61, s61, 131072"], SWS, 40)
    if dbg:
        a("s_cmp_lg_u32 s2, 0")
        a("s_cbranch_scc1 L2_done")
        a("v_lshrrev_b32 v30, 2, v0")
        a("v_mul_u32_u24 v30, 85*512, v30")
        a("v_and_b32 v31, 3, v0")
        a("v_lshl_add_u32 v30, v31, 2, v30")
        a(f"s_mov_b32 s61, {WS_ST}")
        a(f"buffer_load_dword v32, v30, s[{SWS}:{SWS+3}], s61 offen")
        a("s_mov_b32 s28, s24"); a("s_mov_b32 s29, s25"); a("s_mov_b32 s30, 256"); a("s_mov_b32 s31, 0x00020000")
        a("v_lshlrev_b32 v33, 2, v0")
        a("s_waitcnt vmcnt(0)")
        a("v_cmp_eq_u32 vcc, 12, v0")
        a("v_mov_b32 v34, s90")
        a("s_nop 1")
        a("v_cndmask_b32 v32, v32, v34, vcc")
        a("v_cmp_eq_u32 vcc, 13, v0")
        a("v_mov_b32 v34, s92")
        a("s_nop 1")
        a("v_cndmask_b32 v32, v32, v34, vcc")
        a("buffer_store_dword v32, v33, s[28:31], 0 offen")
    a.label("L2_done")
    a("s_endpgm")
    a.label("L2_codeend")

    a.raw('.section .rodata,"a"')
    def kd(name, nv):
        a.raw(".p2align 6")
        a.raw(f".amdhsa_kernel {name}")
        a.raw(f"  .amdhsa_next_free_vgpr {nv}")
        a.raw("  .amdhsa_next_free_sgpr 102")
        a.raw(f"  .amdhsa_accum_offset {(nv+3)//4*4}")
        a.raw("  .amdhsa_group_segment_fixed_size 0")
        a.raw("  .amdhsa_kernarg_size 96")
        a.raw("  .amdhsa_user_sgpr_count 2")
        a.raw("  .amdhsa_user_sgpr_kernarg_segment_ptr 1")
        a.raw("  .amdhsa_system_sgpr_workgroup_id_x 1")
        a.raw(".end_amdhsa_kernel")
    kd("attn_kernel", NV1)
    kd("fin_kernel", 64)
    return "\n".join(a.L) + "\n"

if __name__ == "__main__":
    import argparse
    ap = argparse.ArgumentParser()
    ap.add_argument("-o", default=f"cdna_kernels/{KN}.s")
    ap.add_argument("--pol_kv", default="nt")
    ap.add_argument("--pol_w", default="")
    ap.add_argument("--nb", type=int, default=4)
    ap.add_argument("--nt", type=int, default=4)
    ap.add_argument("--mimic", action="store_true")
    ap.add_argument("--stamp", action="store_true")
    ap.add_argument("--ypace", type=int, default=2)
    ap.add_argument("--wops", type=int, default=2)
    ap.add_argument("--kpat", default="mc")
    ap.add_argument("--kpeel", default="c")
    ap.add_argument("--dbg", action="store_true")
    ap.add_argument("--oprio", type=int, default=3)
    ap.add_argument("--yprio", type=int, default=2)
    ap.add_argument("--wqc", type=int, default=8)
    ap.add_argument("--r0", type=int, default=30)
    ap.add_argument("--abl", default="")
    ap.add_argument("--ystamp", action="store_true")
    ap.add_argument("--clk", action="store_true")
    ap.add_argument("--nocpf", action="store_true")
    args = ap.parse_args()
    open(args.o, "w").write(gen(pol_kv=args.pol_kv, pol_w=args.pol_w, NB=args.nb, NT=args.nt, mimic=args.mimic,
                                stamp=args.stamp, ypace=args.ypace, wo_per_step=args.wops, kpat=args.kpat, kpeel=args.kpeel, dbg=args.dbg, oprio=args.oprio, yprio=args.yprio, wq_chunk=args.wqc, R0=args.r0, abl=args.abl, ystamp=args.ystamp, clk=args.clk, cpf=not args.nocpf))
```
